```python
import torch

def _softmax(x, axis=-1):
    return torch.softmax(x, dim=axis)
def _gelu(x):
    return torch.nn.functional.gelu(x, approximate="tanh")
def _silu(x):
    return torch.nn.functional.silu(x)
def _sigmoid(x):
    return torch.sigmoid(x)
def _layernorm(x, axis=-1, eps=1e-5):
    m = x.mean(dim=axis, keepdim=True)
    v = x.var(dim=axis, keepdim=True, unbiased=False)
    return (x - m) / torch.sqrt(v + eps)
def _scatter_add(tgt, idx, src, axis=0):
    return tgt.clone().index_add_(axis, idx, src)
def _segment_sum(src, seg, n):
    out = torch.zeros((n,) + src.shape[1:], dtype=src.dtype)
    return out.index_add_(0, seg, src)
def _pad(x, pw):
    flat = tuple(v for pair in reversed(pw) for v in pair)
    return torch.nn.functional.pad(x, flat)

kernel_name = 'gated_mix__grouped_kv_mqa__mixer_token_mlp__prompt'

def setup_inputs():

    _w = (lambda a: (lambda t: t.to(torch.bfloat16) if t.is_floating_point() else t)(torch.as_tensor(a)))
    def _A_setup():
        B, S, D, H = 1, 2048, 640, 32
        Dh = D // H
        return {
            "x": _w((lambda *s: torch.randn(*s, dtype=torch.bfloat16) * 0.05)(B, S, D)),
            "wq": _w((lambda *s: torch.randn(*s, dtype=torch.bfloat16) * 0.8)(D, H * Dh)),
            "wk": _w((lambda *s: torch.randn(*s, dtype=torch.bfloat16) * 0.8)(D, Dh)),
            "wv": _w((lambda *s: torch.randn(*s, dtype=torch.bfloat16) * 0.05)(D, Dh)),
            "wo": _w((lambda *s: torch.randn(*s, dtype=torch.bfloat16) * 0.05)(H * Dh, D)),
        }
    _A_in = _A_setup()

    def _B_setup():
        B, S, D, F = 1, 2048, 640, 1536
        return {
            "x": _w((lambda *s: torch.randn(*s, dtype=torch.bfloat16) * 0.05)(B, S, D)),
            "w1": _w((lambda *s: torch.randn(*s, dtype=torch.bfloat16) * 0.2)(S, F) * (S ** -0.5)),
            "b1": _w((lambda *s: torch.randn(*s, dtype=torch.bfloat16) * 3.2)(F) * 0.02),
            "w2": _w((lambda *s: torch.randn(*s, dtype=torch.bfloat16) * 0.05)(F, S) * (F ** -0.5)),
            "b2": _w((lambda *s: torch.randn(*s, dtype=torch.bfloat16) * 0.1)(S) * 0.02),
        }
    _B_in = _B_setup()

    return {
        "A_x": _A_in["x"],
        "A_wq": _A_in["wq"],
        "A_wk": _A_in["wk"],
        "A_wv": _A_in["wv"],
        "A_wo": _A_in["wo"],
        "B_x": _B_in["x"],
        "B_w1": _B_in["w1"],
        "B_b1": _B_in["b1"],
        "B_w2": _B_in["w2"],
        "B_b2": _B_in["b2"],
        "gate_w": _w((lambda *s: torch.randn(*s, dtype=torch.bfloat16) * 0.05)(640) * 16.0),
    }

def reference(A_x, A_wq, A_wk, A_wv, A_wo, B_x, B_w1, B_b1, B_w2, B_b2, gate_w):
    def _A_ref(x, wq, wk, wv, wo):
        B, S, D = x.shape
        H = 32
        Dh = D // H
        q = (lambda x, *d: x.permute(*d))((x @ wq).reshape(B, S, H, Dh), 0, 2, 1, 3)
        k = x @ wk
        v = x @ wv
        scores = torch.einsum("bhqd,bkd->bhqk", q, k) * (Dh ** -0.5)
        p = _softmax(scores, axis=-1)
        o = torch.einsum("bhqk,bkd->bhqd", p, v)
        return (lambda x, *d: x.permute(*d))(o, 0, 2, 1, 3).reshape(B, S, H * Dh) @ wo

    def _B_ref(x, w1, b1, w2, b2):
        B, S, D = x.shape
        h = _layernorm(x, axis=-1)
        u = torch.einsum("bsd,sf->bdf", h, w1) + b1
        u = _gelu(u)
        y = torch.einsum("bdf,fs->bds", u, w2) + b2
        return (lambda x, *d: x.permute(*d))(y, 0, 2, 1)

    x = A_x
    g = _sigmoid((x * gate_w).sum(-1, keepdims=True))
    a = _A_ref(x, A_wq, A_wk, A_wv, A_wo)
    b = _B_ref(x, B_w1, B_b1, B_w2, B_b2)
    return g * a + (1 - g) * b
```

```python
from gen import *
import layout as L

KVB = 13312
G0 = 3 * KVB

def gen_k2():
    k = K(); k.endl = "K2_END"
    prologue(k, 256)
    k(f"""s_load_dwordx2 s[20:21], s[0:1], {KOFF['ws']}
          s_load_dwordx2 s[4:5], s[0:1], {KOFF['w1']}
          s_load_dwordx2 s[6:7], s[0:1], {KOFF['b1']}
          s_waitcnt lgkmcnt(0)
          s_cmp_ge_u32 s3, 8
          s_cbranch_scc1 K2_LOADER""")
    srd_off(k, 8, 20, 21, L.Q, 2048*640*2)
    srd_off(k, 12, 20, 21, L.O, 2048*640*2)
    k("""s_lshr_b32 s22, s2, 3
         s_and_b32 s23, s2, 7
         s_lshl_b32 s23, s23, 8
         s_lshl_b32 s24, s3, 5
         s_add_u32 s23, s23, s24
         v_and_b32 v3, 31, v2
         v_lshrrev_b32 v4, 5, v2
         v_add_u32 v5, s23, v3
         s_mov_b32 s25, 1280
         v_mul_lo_u32 v5, v5, s25
         s_mul_i32 s24, s22, 40
         v_add_u32 v5, s24, v5""")
    Q1, Q2, K1, K2 = 8, 12, 14, 18
    VF = 20
    S0, S1 = 36, 52
    O = 68
    P = 84
    VM, VMC, VMX, VT, VT2 = 92, 93, 94, 95, 96
    ACUR, BCUR, ANXT, BNXT, LA, LB = 97, 98, 99, 100, 101, 102
    k(f"""v_lshlrev_b32 v6, 4, v4
          v_add_u32 v6, v5, v6
          buffer_load_dwordx2 v[{Q1}:{Q1+1}], v6, s[8:11], 0 offen
          buffer_load_dwordx2 v[{Q1+2}:{Q1+3}], v6, s[8:11], 0 offen offset:8
          buffer_load_dwordx2 v[{Q2}:{Q2+1}], v5, s[8:11], 0 offen offset:32
          v_lshlrev_b32 v{LA}, 9, v4
          v_lshlrev_b32 v6, 4, v3
          v_add_u32 v{LA}, v{LA}, v6
          v_lshlrev_b32 v{LB}, 3, v3
          v_mov_b32 v{ACUR}, v{LA}
          v_mov_b32 v{BCUR}, v{LB}
          v_add_u32 v{ANXT}, {KVB}, v{LA}
          v_add_u32 v{BNXT}, {KVB}, v{LB}
          s_mov_b32 s26, {KVB}
          s_mov_b32 s27, 0x3ea52b5c
          s_mov_b32 s28, 0xbea52b5c
          s_mov_b32 s29, 0
          v_mov_b32 v{VM}, 0xf149f2ca
          v_mov_b32 v{VMC}, 0""")
    for i in range(16):
        k(f"v_mov_b32 v{O+i}, 0")
    k(f"""s_waitcnt vmcnt(0)
          v_cmp_gt_u32 vcc, 32, v2
          s_nop 1
          v_cndmask_b32 v{Q2}, 0, v{Q2}, vcc
          v_cndmask_b32 v{Q2+1}, 0, v{Q2+1}, vcc
          s_barrier""")
    def rdK(a, b, t):
        k(f"ds_read_b128 v[{K1}:{K1+3}], v{a} offset:{t*1024}")
        k(f"ds_read_b64 v[{K2}:{K2+1}], v{b} offset:{4096 + t*256}")
    def rdV(a, t, buf):
        for j in range(2):
            r = VF + 8*buf + 4*j
            k(f"ds_read_b128 v[{r}:{r+3}], v{a} offset:{5120 + (2*t+j)*1024}")
    def qk(S):
        k(f"v_mfma_f32_32x32x16_bf16 v[{S}:{S+15}], v[{K1}:{K1+3}], v[{Q1}:{Q1+3}], 0")
        k(f"v_mfma_f32_32x32x8_bf16 v[{S}:{S+15}], v[{K2}:{K2+1}], v[{Q2}:{Q2+1}], v[{S}:{S+15}]")
    rdK(ACUR, BCUR, 0)
    k("s_waitcnt lgkmcnt(0)")
    qk(S0)
    rdK(ACUR, BCUR, 1)
    rdV(ACUR, 0, 0)
    k("s_nop 7\n s_nop 3")
    k.label("K2_ALOOP")
    resc = []
    for t in range(4):
        Sc, Sn = (S0, S1) if t % 2 == 0 else (S1, S0)
        k("s_waitcnt lgkmcnt(0)")
        qk(Sn)
        if t + 2 < 4: rdK(ACUR, BCUR, t + 2)
        else: rdK(ANXT, BNXT, t + 2 - 4)
        if t + 1 < 4: rdV(ACUR, t + 1, (t + 1) % 2)
        else: rdV(ANXT, 0, 0)
        s = lambda i: f"v{Sc+i}"
        k(f"""v_max3_f32 v{VMX}, {s(0)}, {s(1)}, {s(2)}
              v_max3_f32 v{VT}, {s(3)}, {s(4)}, {s(5)}
              v_max3_f32 v{VMX}, v{VMX}, {s(6)}, {s(7)}
              v_max3_f32 v{VT}, v{VT}, {s(8)}, {s(9)}
              v_max3_f32 v{VMX}, v{VMX}, {s(10)}, {s(11)}
              v_max3_f32 v{VT}, v{VT}, {s(12)}, {s(13)}
              v_max3_f32 v{VMX}, v{VMX}, {s(14)}, {s(15)}
              v_max3_f32 v{VMX}, v{VMX}, v{VT}, v{VM}
              v_mov_b32 v{VT}, v{VMX}
              s_nop 1
              v_permlane32_swap_b32 v{VMX}, v{VT}
              v_max_f32 v{VMX}, v{VMX}, v{VT}
              v_cmp_gt_f32 vcc, v{VMX}, v{VM}
              s_cbranch_vccnz K2_RESC{t}""")
        k.label(f"K2_BACK{t}")
        for i in range(16):
            k(f"v_fma_f32 v{Sc+i}, v{Sc+i}, s27, v{VMC}")
            k(f"v_exp_f32 v{Sc+i}, v{Sc+i}")
        k("s_nop 0")
        for i in range(8):
            k(f"v_cvt_pk_bf16_f32 v{P+i}, v{Sc+2*i}, v{Sc+2*i+1}")
        k("s_nop 1")
        vb = VF + 8 * (t % 2)
        k(f"v_mfma_f32_32x32x16_bf16 v[{O}:{O+15}], v[{vb}:{vb+3}], v[{P}:{P+3}], v[{O}:{O+15}]")
        k(f"v_mfma_f32_32x32x16_bf16 v[{O}:{O+15}], v[{vb+4}:{vb+7}], v[{P+4}:{P+7}], v[{O}:{O+15}]")
    k(f"""v_mov_b32 v{ACUR}, v{ANXT}
          v_mov_b32 v{BCUR}, v{BNXT}
          s_add_u32 s26, s26, {KVB}
          s_cmp_ge_u32 s26, {3*KVB}
          s_cselect_b32 s26, 0, s26
          v_add_u32 v{ANXT}, s26, v{LA}
          v_add_u32 v{BNXT}, s26, v{LB}
          s_add_u32 s29, s29, 1
          s_cmp_lt_u32 s29, 16
          s_cbranch_scc0 K2_AEND
          s_barrier
          s_branch K2_ALOOP""")
    for t in range(4):
        k.label(f"K2_RESC{t}")
        k(f"""v_sub_f32 v{VT}, v{VM}, v{VMX}
              v_mul_f32 v{VT}, s27, v{VT}
              v_exp_f32 v{VT}, v{VT}
              v_mov_b32 v{VM}, v{VMX}
              v_mul_f32 v{VMC}, s28, v{VMX}""")
        for i in range(12):
            k(f"v_mul_f32 v{O+i}, v{O+i}, v{VT}")
        k(f"s_branch K2_BACK{t}")
    k.label("K2_AEND")
    k(f"""s_waitcnt lgkmcnt(0)
          s_nop 7
          s_nop 7
          v_mov_b32 v{VT}, v{O+8}
          v_mov_b32 v{VT2}, v{O+8}
          s_nop 1
          v_permlane32_swap_b32 v{VT}, v{VT2}
          v_rcp_f32 v{VT2}, v{VT2}
          s_nop 0""")
    for i in range(12):
        k(f"v_mul_f32 v{O+i}, v{O+i}, v{VT2}")
    for i in range(6):
        k(f"v_cvt_pk_bf16_f32 v{P+i}, v{O+2*i}, v{O+2*i+1}")
    k(f"""v_lshlrev_b32 v6, 3, v4
          v_add_u32 v6, v5, v6
          buffer_store_dwordx2 v[{P}:{P+1}], v6, s[12:15], 0 offen
          buffer_store_dwordx2 v[{P+2}:{P+3}], v6, s[12:15], 0 offen offset:16
          v_cmp_gt_u32 vcc, 32, v2
          s_and_saveexec_b64 s[30:31], vcc
          buffer_store_dwordx2 v[{P+4}:{P+5}], v5, s[12:15], 0 offen offset:32
          s_endpgm""")
    k.label("K2_LOADER")
    k("s_sub_u32 s3, s3, 8")
    srd_off(k, 8, 20, 21, L.KA, 2048*32)
    srd_off(k, 12, 20, 21, L.KB, 2048*8)
    srd_off(k, 16, 20, 21, L.VT, 21*4096)
    srd_off(k, 40, 20, 21, L.H, 2048*640*2)
    srd(k, 44, 4, 5, 2048*1536*2)
    srd(k, 48, 6, 7, 1536*2)
    srd_off(k, 52, 20, 21, L.U, 640*1536*2)
    KS = 128
    k(f"""s_mul_hi_u32 s22, s2, 0xaaaaaab
          s_mul_i32 s23, s22, 24
          s_sub_u32 s23, s2, s23
          s_mov_b32 s24, 3072
          s_mov_b32 s25, 1280
          s_mul_i32 s31, s3, {4*8*3072}
          s_lshl_b32 s34, s23, 7
          s_add_u32 s31, s31, s34
          s_mul_i32 s32, s3, {4*8*1280}
          s_lshl_b32 s34, s22, 7
          s_add_u32 s32, s32, s34
          s_lshl_b32 s33, s3, 12
          s_and_b32 s35, s3, 1
          s_lshr_b32 s36, s3, 1
          s_mov_b32 s37, s35
          s_mov_b32 s38, s36""")
    tr_voff(k, 3, 2, 24, 10, 11)
    tr_voff(k, 4, 2, 25, 10, 11)
    tr_rd(k, 6, 2, 37, 10, 11)
    tr_rd(k, 7, 2, 38, 10, 11)
    k(f"v_add_u32 v6, {G0}, v6\n v_add_u32 v7, {G0}, v7")
    k("""v_and_b32 v10, 31, v2
         v_lshrrev_b32 v11, 5, v2
         v_lshlrev_b32 v11, 4, v11
         v_lshlrev_b32 v8, 5, v10
         v_add_u32 v8, v8, v11
         v_lshlrev_b32 v9, 4, v2
         v_lshlrev_b32 v5, 12, v10
         v_add_u32 v5, v5, v11""")
    opM = Opnd('tr', 44, 3072, [3], 31, 6)
    opN = Opnd('tr', 40, 1280, [4], 32, 7)
    ACC = 16; FM = 32; FN = 44
    def kv_dma(c):
        slot = (c % 3) * KVB
        k(f"""s_lshl_b32 s34, s3, 10
              s_add_u32 m0, s34, {slot}
              s_add_u32 s34, s34, {c*4096}
              buffer_load_dwordx4 v8, s[8:11], s34 offen lds
              s_lshl_b32 s34, s3, 11
              s_add_u32 m0, s34, {slot + 5120}
              s_lshl_b32 s39, s3, 6
              s_add_u32 s39, s39, {c*256}
              buffer_load_dwordx4 v5, s[16:19], s39 offen lds
              s_add_u32 m0, s34, {slot + 5120 + 1024}
              s_add_u32 s39, s39, 32
              buffer_load_dwordx4 v5, s[16:19], s39 offen lds""")
        lab = k.new("K2_NKB")
        k(f"""s_cmp_lg_u32 s3, 0
              s_cbranch_scc1 {lab}
              s_mov_b32 m0, {slot + 4096}
              s_mov_b32 s34, {c*1024}
              buffer_load_dwordx4 v9, s[12:15], s34 offen lds""")
        k.label(lab)
    TS = 64 * KS * 2
    def g_dma(t):
        lab = k.new("K2_NG")
        k(f"s_cmp_ge_u32 s2, 240\n s_cbranch_scc1 {lab}")
        b = G0 + (t % 2) * 2 * TS
        dma_tile(k, opM, KS, t*KS, b, 33, 34)
        dma_tile(k, opN, KS, t*KS, b + TS, 33, 34)
        k.label(lab)
    kv_dma(0); kv_dma(1); g_dma(0)
    nk = KS // 16
    for p in range(16):
        k("s_waitcnt vmcnt(0)\n s_barrier")
        if p + 2 < 16: kv_dma(p + 2)
        if p + 1 < 16: g_dma(p + 1)
        lab = k.new("K2_NC")
        k(f"s_cmp_ge_u32 s2, 240\n s_cbranch_scc1 {lab}")
        b = G0 + (p % 2) * 2 * TS
        cnt = []
        def rd(kk):
            c = frag_read(k, opM, KS, kk, b - G0, FM + 4*(kk % 3), 12)
            c += frag_read(k, opN, KS, kk, b - G0 + TS, FN + 4*(kk % 3), 13)
            cnt.append(c)
        rd(0); rd(1)
        for kk in range(nk):
            if kk + 2 < nk: rd(kk + 2)
            k(f"s_waitcnt lgkmcnt({sum(cnt[kk+1:])})")
            a = FM + 4*(kk % 3); bb = FN + 4*(kk % 3)
            c = "0" if (p == 0 and kk == 0) else f"v[{ACC}:{ACC+15}]"
            k(f"v_mfma_f32_32x32x16_bf16 v[{ACC}:{ACC+15}], v[{a}:{a+3}], v[{bb}:{bb+3}], {c}")
        k.label(lab)
    k("s_cmp_ge_u32 s2, 240\n s_cbranch_scc1 K2_END")
    k(f"""v_and_b32 v10, 31, v2
          s_lshl_b32 s34, s22, 6
          s_lshl_b32 s39, s36, 5
          s_add_u32 s34, s34, s39
          v_add_u32 v10, s34, v10
          v_mul_lo_u32 v10, v10, s24
          v_lshrrev_b32 v11, 5, v2
          v_lshlrev_b32 v11, 3, v11
          s_lshl_b32 s34, s23, 7
          s_lshl_b32 s39, s35, 6
          s_add_u32 s34, s34, s39
          v_add_u32 v11, s34, v11
          v_add_u32 v10, v10, v11""")
    for j in range(4):
        k(f"buffer_load_dwordx2 v[{56+2*j}:{57+2*j}], v11, s[48:51], 0 offen offset:{16*j}")
    k("s_mov_b32 s34, 0x3d372713\n s_mov_b32 s39, 0xc0135761\n s_waitcnt vmcnt(0)\n s_nop 7")
    for j in range(4):
        for h2 in range(2):
            a = ACC + 4*j + 2*h2; br = 56 + 2*j + h2
            k(f"""v_cvt_pk_bf16_f32 v64, v{a}, v{a+1}
                  v_lshlrev_b32 v65, 16, v64
                  v_and_b32 v64, 0xffff0000, v64
                  v_lshlrev_b32 v66, 16, v{br}
                  v_and_b32 v67, 0xffff0000, v{br}
                  v_add_f32 v65, v65, v66
                  v_add_f32 v64, v64, v67
                  v_cvt_pk_bf16_f32 v64, v65, v64
                  v_lshlrev_b32 v65, 16, v64
                  v_and_b32 v64, 0xffff0000, v64
                  v_mul_f32 v66, v65, v65
                  v_mul_f32 v67, v64, v64
                  v_fma_f32 v66, v66, s34, 1.0
                  v_fma_f32 v67, v67, s34, 1.0
                  v_mul_f32 v66, v66, v65
                  v_mul_f32 v67, v67, v64
                  v_mul_f32 v66, s39, v66
                  v_mul_f32 v67, s39, v67
                  v_exp_f32 v66, v66
                  v_exp_f32 v67, v67
                  s_nop 0
                  v_add_f32 v66, 1.0, v66
                  v_add_f32 v67, 1.0, v67
                  v_rcp_f32 v66, v66
                  v_rcp_f32 v67, v67
                  s_nop 0
                  v_mul_f32 v66, v66, v65
                  v_mul_f32 v67, v67, v64
                  v_cvt_pk_bf16_f32 v{68+2*j+h2}, v66, v67""")
    for j in range(4):
        k(f"buffer_store_dwordx2 v[{68+2*j}:{69+2*j}], v10, s[52:55], 0 offen offset:{16*j}")
    k.label("K2_END")
    k("s_endpgm")
    return k.text(), dict(vgpr=104, sgpr=64, lds=G0 + 4*TS, grid=256, block=768)

def gen_k3():
    k = K(); k.endl = "K3_END"
    prologue(k, 320)
    k(f"""s_load_dwordx2 s[20:21], s[0:1], {KOFF['ws']}
          s_load_dwordx2 s[4:5], s[0:1], {KOFF['wo']}
          s_load_dwordx2 s[6:7], s[0:1], {KOFF['w2']}
          s_load_dwordx2 s[22:23], s[0:1], {KOFF['b2']}
          s_load_dwordx2 s[24:25], s[0:1], {KOFF['out']}
          s_waitcnt lgkmcnt(0)""")
    srd(k, 8, 4, 5, 640*640*2)
    srd_off(k, 12, 20, 21, L.O, 2048*640*2)
    srd_off(k, 16, 20, 21, L.U, 640*1536*2)
    srd(k, 40, 6, 7, 1536*2048*2)
    srd(k, 44, 22, 23, 2048*2)
    srd_off(k, 48, 20, 21, L.G, 2048*4)
    srd(k, 52, 24, 25, 2048*640*2)
    KS, NS = 128, 2
    k(f"""s_mul_hi_u32 s28, s2, 0x1999999a
          s_mul_i32 s29, s28, 10
          s_sub_u32 s29, s2, s29
          s_mov_b32 s30, 1280
          s_mov_b32 s56, 3072
          s_mov_b32 s57, 4096
          s_lshl_b32 s33, s3, 12
          s_and_b32 s35, s3, 1
          s_lshr_b32 s36, s3, 1""")
    k(f"""s_mul_i32 s58, s3, {32*1280}
          s_lshl_b32 s34, s29, 7
          s_add_u32 s58, s58, s34
          s_lshl_b32 s59, s28, 6
          s_lshl_b32 s34, s3, 4
          s_add_u32 s59, s59, s34
          s_mul_i32 s59, s59, 1280
          s_lshl_b32 s60, s29, 6
          s_add_u32 s60, s60, s34
          s_mul_i32 s60, s60, 3072
          s_lshl_b32 s61, s3, 17
          s_lshl_b32 s34, s28, 7
          s_add_u32 s61, s61, s34""")
    tr_voff(k, 3, 2, 30, 10, 11)
    tr_voff(k, 4, 2, 57, 10, 11)
    dir_voff128(k, [60, 61, 62, 63], 2, 30, 10, 11)
    dir_voff128(k, [64, 65, 66, 67], 2, 56, 10, 11)
    k("s_mov_b32 s37, s35"); tr_rd(k, 6, 2, 37, 10, 11)
    k("s_mov_b32 s37, s36"); tr_rd(k, 7, 2, 37, 10, 11)
    k("s_mov_b32 s37, s35"); dir_rd(k, 8, 2, 37, KS, 10, 11)
    k("s_mov_b32 s37, s36"); dir_rd(k, 9, 2, 37, KS, 10, 11)
    opWo = Opnd('tr', 8, 1280, [3], 58, 6)
    opO = Opnd('dir', 12, 1280, [60, 61, 62, 63], 59, 9)
    opU = Opnd('dir', 16, 3072, [64, 65, 66, 67], 60, 8)
    opW2 = Opnd('tr', 40, 4096, [4], 61, 7)
    AA, AB = 16, 68
    steps = [(opWo, opO, t*KS, t*KS, AA, t == 0) for t in range(640 // KS)]
    steps += [(opU, opW2, t*KS, t*KS, AB, t == 0) for t in range(1536 // KS)]
    gemm_ring(k, steps, KS, NS, 0, 33, 34, 32, 44, 12)
    k(f"""v_and_b32 v10, 31, v2
          s_lshl_b32 s34, s28, 6
          s_lshl_b32 s39, s36, 5
          s_add_u32 s34, s34, s39
          v_add_u32 v10, s34, v10
          v_lshlrev_b32 v11, 2, v10
          v_lshlrev_b32 v12, 1, v10
          buffer_load_dword v13, v11, s[48:51], 0 offen
          buffer_load_ushort v14, v12, s[44:47], 0 offen
          v_mul_lo_u32 v10, v10, s30
          v_lshrrev_b32 v11, 5, v2
          v_lshlrev_b32 v11, 3, v11
          v_add_u32 v10, v10, v11
          s_lshl_b32 s34, s29, 7
          s_lshl_b32 s39, s35, 6
          s_add_u32 s34, s34, s39
          v_add_u32 v10, s34, v10
          s_waitcnt vmcnt(0)
          v_lshlrev_b32 v14, 16, v14
          v_sub_f32 v15, 1.0, v13
          v_cvt_pk_bf16_f32 v15, v15, v15
          v_and_b32 v15, 0xffff0000, v15
          s_nop 7""")
    for j in range(4):
        for h2 in range(2):
            a = AA + 4*j + 2*h2; b = AB + 4*j + 2*h2
            k(f"""v_cvt_pk_bf16_f32 v56, v{a}, v{a+1}
                  v_cvt_pk_bf16_f32 v57, v{b}, v{b+1}
                  v_lshlrev_b32 v58, 16, v56
                  v_and_b32 v56, 0xffff0000, v56
                  v_lshlrev_b32 v59, 16, v57
                  v_and_b32 v57, 0xffff0000, v57
                  v_add_f32 v59, v59, v14
                  v_add_f32 v57, v57, v14
                  v_cvt_pk_bf16_f32 v57, v59, v57
                  v_lshlrev_b32 v59, 16, v57
                  v_and_b32 v57, 0xffff0000, v57
                  v_mul_f32 v58, v58, v13
                  v_mul_f32 v56, v56, v13
                  v_mul_f32 v59, v59, v15
                  v_mul_f32 v57, v57, v15
                  v_cvt_pk_bf16_f32 v56, v58, v56
                  v_cvt_pk_bf16_f32 v57, v59, v57
                  v_lshlrev_b32 v58, 16, v56
                  v_and_b32 v56, 0xffff0000, v56
                  v_lshlrev_b32 v59, 16, v57
                  v_and_b32 v57, 0xffff0000, v57
                  v_add_f32 v58, v58, v59
                  v_add_f32 v56, v56, v57
                  v_cvt_pk_bf16_f32 v{84+2*j+h2}, v58, v56""")
    for j in range(4):
        k(f"buffer_store_dwordx2 v[{84+2*j}:{85+2*j}], v10, s[52:55], 0 offen offset:{16*j}")
    k.label("K3_END")
    k("s_endpgm")
    return k.text(), dict(vgpr=96, sgpr=72, lds=NS*2*64*KS*2, grid=320, block=256)
```

```python
import sys
import layout as L
NAME = "gated_mix__grouped_kv_mqa__mixer_token_mlp__prompt"

class K:
    def __init__(self):
        self.L = []
        self.uid = 0
    def __call__(self, s):
        for line in s.strip("\n").split("\n"):
            self.L.append("    " + line.strip())
    def label(self, n):
        self.L.append(n + ":")
    def new(self, p):
        self.uid += 1
        return f"{p}_{self.uid}"
    def text(self):
        return "\n".join(self.L) + "\n"

def srd(k, d, lo, hi, size):
    k(f"""s_mov_b32 s{d}, s{lo}
          s_and_b32 s{d+1}, s{hi}, 0xffff
          s_mov_b32 s{d+2}, {size}
          s_mov_b32 s{d+3}, 0x00020000""")

def srd_off(k, d, lo, hi, off, size):
    k(f"""s_add_u32 s{d}, s{lo}, {off}
          s_addc_u32 s{d+1}, s{hi}, 0
          s_and_b32 s{d+1}, s{d+1}, 0xffff
          s_mov_b32 s{d+2}, {size}
          s_mov_b32 s{d+3}, 0x00020000""")

KOFF = dict(x=0, wq=8, wk=16, wv=24, wo=32, bx=40, w1=48, b1=56, w2=64, b2=72, gw=80, out=88, dbg=96, ws=104)

class Opnd:
    def __init__(self, typ, srd, pitch, voff, sbase, rd):
        self.typ = typ
        self.srd = srd
        self.pitch = pitch
        self.voff = voff
        self.sbase = sbase
        self.rd = rd

def dma_tile(k, op, KS, k0, ldsoff, s_wlds, s_tmp):
    ipw = (64 * KS * 2 // 1024) // 4
    for ii in range(ipw):
        if op.typ == 'tr':
            g = (k0 + 8 * ii) * op.pitch
            v = op.voff[0]
        else:
            rows_per = 1024 // (KS * 2)
            g = rows_per * ii * op.pitch + k0 * 2
            v = op.voff[ii % len(op.voff)]
        k(f"s_add_u32 m0, s{s_wlds}, {ldsoff + ii * 1024}")
        k(f"s_add_u32 s{s_tmp}, s{op.sbase}, {g}")
        k(f"buffer_load_dwordx4 v{v}, s[{op.srd}:{op.srd+3}], s{s_tmp} offen lds")

def frag_read(k, op, KS, kk, ldsoff, dst, vtmp):
    if op.typ == 'tr':
        k(f"ds_read_b64_tr_b16 v[{dst}:{dst+1}], v{op.rd} offset:{ldsoff + (16*kk)*128}")
        k(f"ds_read_b64_tr_b16 v[{dst+2}:{dst+3}], v{op.rd} offset:{ldsoff + (16*kk+4)*128}")
        return 2
    else:
        if kk == 0:
            k(f"ds_read_b128 v[{dst}:{dst+3}], v{op.rd} offset:{ldsoff}")
        else:
            k(f"v_xor_b32 v{vtmp}, {kk*32}, v{op.rd}")
            k(f"ds_read_b128 v[{dst}:{dst+3}], v{vtmp} offset:{ldsoff}")
        return 1

def gemm_ring(k, steps, KS, NS, lds0, s_wlds, s_tmp, fragM, fragN, vtmp, extra_vm=0, pre_issued=False, barrier_hook=None):
    TS = 64 * KS * 2
    ipw = (TS // 1024) // 4
    D = 2 * ipw
    n = len(steps)
    def issue(t):
        opM, opN, k0M, k0N, acc, first = steps[t]
        b = lds0 + (t % NS) * 2 * TS
        dma_tile(k, opM, KS, k0M, b, s_wlds, s_tmp)
        dma_tile(k, opN, KS, k0N, b + TS, s_wlds, s_tmp)
    if not pre_issued:
        for t in range(min(NS - 1, n)):
            issue(t)
    nk = KS // 16
    for t in range(n):
        opM, opN, k0M, k0N, acc, first = steps[t]
        inflight_after = min(n - 1, t + NS - 2) - t
        k(f"s_waitcnt vmcnt({inflight_after * D})")
        k("s_barrier")
        if t + NS - 1 < n:
            issue(t + NS - 1)
        b = lds0 + (t % NS) * 2 * TS
        cnt = []
        def rd(kk):
            c = frag_read(k, opM, KS, kk, b, fragM + 4 * (kk % 3), vtmp)
            c += frag_read(k, opN, KS, kk, b + TS, fragN + 4 * (kk % 3), vtmp + 1)
            cnt.append(c)
        rd(0); rd(1)
        for kk in range(nk):
            if kk + 2 < nk:
                rd(kk + 2)
            pend = sum(cnt[kk + 1:])
            k(f"s_waitcnt lgkmcnt({pend})")
            a = fragM + 4 * (kk % 3); bb = fragN + 4 * (kk % 3)
            c = "0" if (first and kk == 0) else f"v[{acc}:{acc+15}]"
            k(f"v_mfma_f32_32x32x16_bf16 v[{acc}:{acc+15}], v[{a}:{a+3}], v[{bb}:{bb+3}], {c}")

def lane_setup_gemm(k, KS, vl, vt, tr_voff, dir_voff, tr_rd, dir_rd, wm_s=None):
    pass

def tr_voff(k, dst, vl, pitch_s, t0, t1):
    k(f"""v_lshrrev_b32 v{t0}, 3, v{vl}
          v_mul_lo_u32 v{t0}, v{t0}, s{pitch_s}
          v_lshrrev_b32 v{t1}, 4, v{vl}
          v_and_b32 v{t1}, 1, v{t1}
          v_lshlrev_b32 v{t1}, 2, v{t1}
          v_and_b32 v{dst}, 7, v{vl}
          v_xor_b32 v{dst}, v{dst}, v{t1}
          v_lshlrev_b32 v{dst}, 4, v{dst}
          v_add_u32 v{dst}, v{dst}, v{t0}""")

def dir_voff64(k, dsts, vl, pitch_s, t0, t1):
    for par, dst in enumerate(dsts):
        k(f"""v_lshrrev_b32 v{t0}, 3, v{vl}
              v_mul_lo_u32 v{t0}, v{t0}, s{pitch_s}
              v_lshrrev_b32 v{t1}, 4, v{vl}
              v_add_u32 v{t1}, {4*par}, v{t1}
              v_and_b32 v{dst}, 7, v{vl}
              v_xor_b32 v{dst}, v{dst}, v{t1}
              v_lshlrev_b32 v{dst}, 4, v{dst}
              v_add_u32 v{dst}, v{dst}, v{t0}""")

def dir_voff128(k, dsts, vl, pitch_s, t0, t1):
    for par, dst in enumerate(dsts):
        k(f"""v_lshrrev_b32 v{t0}, 4, v{vl}
              v_add_u32 v{t1}, {4*par}, v{t0}
              v_mul_lo_u32 v{t0}, v{t0}, s{pitch_s}
              v_and_b32 v{dst}, 15, v{vl}
              v_xor_b32 v{dst}, v{dst}, v{t1}
              v_lshlrev_b32 v{dst}, 4, v{dst}
              v_add_u32 v{dst}, v{dst}, v{t0}""")

def tr_rd(k, dst, vl, half_s, t0, t1):
    k(f"""v_and_b32 v{t0}, 3, v{vl}
          v_lshlrev_b32 v{t0}, 3, v{t0}
          v_lshrrev_b32 v{t1}, 4, v{vl}
          v_and_b32 v{t1}, 1, v{t1}
          v_lshlrev_b32 v{t1}, 5, v{t1}
          v_add_u32 v{t0}, v{t0}, v{t1}
          s_lshl_b32 s{half_s}, s{half_s}, 6
          v_add_u32 v{t0}, s{half_s}, v{t0}
          v_lshrrev_b32 v{t1}, 3, v{vl}
          v_and_b32 v{t1}, 1, v{t1}
          v_lshlrev_b32 v{t1}, 6, v{t1}
          v_xor_b32 v{t0}, v{t0}, v{t1}
          v_lshrrev_b32 v{t1}, 2, v{vl}
          v_and_b32 v{t1}, 3, v{t1}
          v_lshlrev_b32 v{t1}, 7, v{t1}
          v_add_u32 v{t0}, v{t0}, v{t1}
          v_lshrrev_b32 v{t1}, 5, v{vl}
          v_lshlrev_b32 v{t1}, 10, v{t1}
          v_add_u32 v{dst}, v{t0}, v{t1}""")

def dir_rd(k, dst, vl, half_s, KS, t0, t1):
    rb = KS * 2
    sh = {128: 7, 256: 8}[rb]
    k(f"""v_and_b32 v{t0}, 31, v{vl}
          s_lshl_b32 s{half_s}, s{half_s}, 5
          v_add_u32 v{t0}, s{half_s}, v{t0}""")
    if KS == 64:
        k(f"""v_lshrrev_b32 v{t1}, 1, v{t0}
              v_and_b32 v{t1}, 7, v{t1}""")
    else:
        k(f"v_and_b32 v{t1}, 15, v{t0}")
    k(f"""v_lshrrev_b32 v{dst}, 5, v{vl}
          v_xor_b32 v{dst}, v{dst}, v{t1}
          v_lshlrev_b32 v{dst}, 4, v{dst}
          v_lshlrev_b32 v{t0}, {sh}, v{t0}
          v_add_u32 v{dst}, v{dst}, v{t0}""")

def prologue(k, nwg):
    k(f"""s_cmp_ge_u32 s2, {nwg}
          s_cbranch_scc1 {k.endl}
          v_lshrrev_b32 v1, 6, v0
          v_and_b32 v2, 63, v0
          s_nop 0
          v_readfirstlane_b32 s3, v1""")

def gen_k1():
    k = K(); k.endl = "K1_END"
    prologue(k, 384)
    k(f"""s_load_dwordx2 s[4:5], s[0:1], {KOFF['x']}
          s_load_dwordx2 s[6:7], s[0:1], {KOFF['wq']}
          s_load_dwordx2 s[20:21], s[0:1], {KOFF['ws']}
          s_load_dwordx2 s[22:23], s[0:1], {KOFF['wk']}
          s_load_dwordx2 s[24:25], s[0:1], {KOFF['wv']}
          s_load_dwordx2 s[26:27], s[0:1], {KOFF['gw']}
          s_waitcnt lgkmcnt(0)""")
    srd(k, 8, 4, 5, 2048*640*2)
    k("""s_cmp_ge_u32 s2, 320
         s_cbranch_scc1 K1_ROWS""")
    srd(k, 12, 6, 7, 640*640*2)
    srd_off(k, 16, 20, 21, L.Q, 2048*640*2)
    KS, NS = 64, 4
    k("""s_mul_hi_u32 s28, s2, 0x1999999a
         s_mul_i32 s29, s28, 10
         s_sub_u32 s29, s2, s29
         s_mov_b32 s30, 1280""")
    ipw = 2
    k(f"""s_mul_i32 s31, s3, {ipw*8*1280}
          s_lshl_b32 s34, s29, 7
          s_add_u32 s31, s31, s34
          s_lshl_b32 s32, s28, 6
          s_mul_i32 s34, s3, {ipw*8}
          s_add_u32 s32, s32, s34
          s_mul_i32 s32, s32, 1280
          s_lshl_b32 s33, s3, {10+1}
          s_and_b32 s35, s3, 1
          s_lshr_b32 s36, s3, 1""")
    k("s_mov_b32 s37, s35\n s_mov_b32 s38, s36")
    tr_voff(k, 3, 2, 30, 10, 11)
    dir_voff64(k, [4, 5], 2, 30, 10, 11)
    tr_rd(k, 6, 2, 37, 10, 11)
    dir_rd(k, 7, 2, 38, KS, 10, 11)
    opM = Opnd('tr', 12, 1280, [3], 31, 6)
    opN = Opnd('dir', 8, 1280, [4, 5], 32, 7)
    ACC = 16
    steps = [(opM, opN, t*KS, t*KS, ACC, t == 0) for t in range(640 // KS)]
    gemm_ring(k, steps, KS, NS, 0, 33, 34, 32, 44, 12)
    k(f"""v_and_b32 v10, 31, v2
          s_lshl_b32 s34, s28, 6
          s_lshl_b32 s39, s36, 5
          s_add_u32 s34, s34, s39
          v_add_u32 v10, s34, v10
          v_mul_lo_u32 v10, v10, s30
          v_lshrrev_b32 v11, 5, v2
          v_lshlrev_b32 v11, 3, v11
          v_add_u32 v10, v10, v11
          s_lshl_b32 s34, s29, 7
          s_lshl_b32 s39, s35, 6
          s_add_u32 s34, s34, s39
          v_add_u32 v10, s34, v10
          s_nop 7
          s_nop 3""")
    for j in range(4):
        a = ACC + 4*j
        k(f"""v_cvt_pk_bf16_f32 v{56+2*j}, v{a}, v{a+1}
              v_cvt_pk_bf16_f32 v{57+2*j}, v{a+2}, v{a+3}""")
    for j in range(4):
        k(f"buffer_store_dwordx2 v[{56+2*j}:{57+2*j}], v10, s[16:19], 0 offen offset:{16*j}")
    k("s_endpgm")
    k.label("K1_ROWS")
    k("s_sub_u32 s28, s2, 320")
    srd(k, 12, 22, 23, 640*20*2)
    srd(k, 16, 24, 25, 640*20*2)
    srd(k, 40, 26, 27, 640*2)
    srd_off(k, 44, 20, 21, L.H, 2048*640*2)
    srd_off(k, 48, 20, 21, L.G, 2048*4)
    srd_off(k, 52, 20, 21, L.KA, 2048*32)
    srd_off(k, 56, 20, 21, L.KB, 2048*8)
    srd_off(k, 60, 20, 21, L.VT, 21*4096)
    WVL = 26112
    k("v_lshlrev_b32 v3, 4, v2")
    for i in range(7):
        lab = k.new("K1_SK")
        if i == 6:
            k(f"s_cmp_ge_u32 s3, 1\n s_cbranch_scc1 {lab}")
        k(f"""s_lshl_b32 s34, s3, 10
              s_add_u32 s34, s34, {i*4096}
              s_mov_b32 m0, s34
              s_nop 0
              buffer_load_dwordx4 v3, s[12:15], s34 offen lds
              s_add_u32 s35, s34, {WVL}
              s_mov_b32 m0, s35
              s_nop 0
              buffer_load_dwordx4 v3, s[16:19], s34 offen lds""")
        if i == 6:
            k.label(lab)
    k(f"""v_lshrrev_b32 v4, 3, v0
          v_and_b32 v5, 7, v0
          s_lshl_b32 s34, s28, 5
          v_add_u32 v6, s34, v4
          s_mov_b32 s30, 1280
          v_mul_lo_u32 v7, v6, s30
          v_lshlrev_b32 v8, 4, v5
          v_add_u32 v7, v7, v8""")
    X0 = 64; GW0 = 104
    for i in range(10):
        k(f"buffer_load_dwordx4 v[{X0+4*i}:{X0+4*i+3}], v7, s[8:11], 0 offen offset:{128*i}")
    for i in range(10):
        k(f"buffer_load_dwordx4 v[{GW0+4*i}:{GW0+4*i+3}], v8, s[40:43], 0 offen offset:{128*i}")
    k("s_waitcnt vmcnt(0)")
    k("v_mov_b32 v10, 0\n v_mov_b32 v11, 0")
    for i in range(40):
        xr = X0 + i; gr = GW0 + i
        k(f"""v_lshlrev_b32 v12, 16, v{xr}
              v_and_b32 v13, 0xffff0000, v{xr}
              v_lshlrev_b32 v14, 16, v{gr}
              v_and_b32 v15, 0xffff0000, v{gr}
              v_add_f32 v10, v10, v12
              v_add_f32 v10, v10, v13
              v_mul_f32 v14, v12, v14
              v_mul_f32 v15, v13, v15
              v_cvt_pk_bf16_f32 v14, v14, v15
              v_lshlrev_b32 v15, 16, v14
              v_and_b32 v14, 0xffff0000, v14
              v_add_f32 v11, v11, v15
              v_add_f32 v11, v11, v14""")
    def red8(r, t):
        for m in (0x041F, 0x081F, 0x101F):
            k(f"""ds_swizzle_b32 v{t}, v{r} offset:{m}
                  s_waitcnt lgkmcnt(0)
                  v_add_f32 v{r}, v{r}, v{t}""")
    red8(10, 12); red8(11, 12)
    k(f"""s_mov_b32 s34, 0x3acccccd
          v_mul_f32 v10, s34, v10""")
    k("v_mov_b32 v16, 0")
    for i in range(40):
        xr = X0 + i
        k(f"""v_lshlrev_b32 v12, 16, v{xr}
              v_and_b32 v13, 0xffff0000, v{xr}
              v_sub_f32 v12, v12, v10
              v_sub_f32 v13, v13, v10
              v_fmac_f32 v16, v12, v12
              v_fmac_f32 v16, v13, v13""")
    red8(16, 12)
    k(f"""v_mul_f32 v16, s34, v16
          v_cvt_pk_bf16_f32 v17, v10, v16
          v_lshlrev_b32 v18, 16, v17
          v_and_b32 v19, 0xffff0000, v17
          v_add_f32 v19, 0x3727c5ac, v19
          v_cvt_pk_bf16_f32 v19, v19, v19
          v_and_b32 v19, 0xffff0000, v19
          v_sqrt_f32 v19, v19
          s_nop 0
          v_cvt_pk_bf16_f32 v19, v19, v19
          v_and_b32 v19, 0xffff0000, v19
          v_rcp_f32 v20, v19
          s_nop 0""")
    for i in range(40):
        xr = X0 + i
        k(f"""v_lshlrev_b32 v12, 16, v{xr}
              v_and_b32 v13, 0xffff0000, v{xr}
              v_sub_f32 v12, v12, v18
              v_sub_f32 v13, v13, v18
              v_cvt_pk_bf16_f32 v12, v12, v13
              v_and_b32 v13, 0xffff0000, v12
              v_lshlrev_b32 v12, 16, v12
              v_mul_f32 v14, v12, v20
              v_mul_f32 v15, v13, v20
              v_fma_f32 v12, -v14, v19, v12
              v_fma_f32 v13, -v15, v19, v13
              v_fma_f32 v14, v12, v20, v14
              v_fma_f32 v15, v13, v20, v15
              v_cvt_pk_bf16_f32 v{xr}, v14, v15""")
    for i in range(10):
        k(f"buffer_store_dwordx4 v[{X0+4*i}:{X0+4*i+3}], v7, s[44:47], 0 offen offset:{128*i}")
    k(f"""v_cvt_pk_bf16_f32 v11, v11, v11
          v_and_b32 v11, 0xffff0000, v11
          v_mul_f32 v11, 0xbfb8aa3b, v11
          v_exp_f32 v11, v11
          s_nop 0
          v_add_f32 v11, 1.0, v11
          v_rcp_f32 v11, v11
          s_nop 0
          v_cvt_pk_bf16_f32 v11, v11, v11
          v_and_b32 v11, 0xffff0000, v11
          v_lshlrev_b32 v12, 2, v6
          v_cmp_eq_u32 vcc, 0, v5
          s_and_saveexec_b64 s[36:37], vcc
          buffer_store_dword v11, v12, s[48:51], 0 offen
          s_mov_b64 exec, s[36:37]""")
    k(f"""s_and_b32 s35, s3, 1
          s_lshr_b32 s36, s3, 1
          v_and_b32 v4, 15, v2
          v_lshrrev_b32 v5, 4, v2
          s_lshl_b32 s34, s28, 5
          s_lshl_b32 s37, s35, 4
          s_add_u32 s34, s34, s37
          v_add_u32 v6, s34, v4
          v_mul_lo_u32 v7, v6, s30
          v_lshlrev_b32 v8, 4, v5
          v_add_u32 v7, v7, v8""")
    XF = 144
    for ks in range(20):
        k(f"buffer_load_dwordx4 v[{XF+4*ks}:{XF+4*ks+3}], v7, s[8:11], 0 offen offset:{64*ks}")
    k(f"""v_lshrrev_b32 v9, 2, v4
          v_lshlrev_b32 v10, 3, v5
          v_add_u32 v9, v9, v10
          v_mul_u32_u24 v9, 40, v9
          v_and_b32 v10, 3, v4
          v_lshlrev_b32 v10, 3, v10
          v_add_u32 v9, v9, v10
          s_mul_i32 s37, s36, {WVL}
          v_add_u32 v9, s37, v9
          s_waitcnt vmcnt(0) lgkmcnt(0)
          s_barrier""")
    WF = 24
    lab_v = "K1_VPATH"; lab_done = "K1_KVDONE"
    def kvloop(isV):
        for ks in range(20):
            for ct in range(2):
                o = ks*32*40 + ct*32
                k(f"ds_read_b64_tr_b16 v[{WF+4*ct}:{WF+4*ct+1}], v9 offset:{o}")
                k(f"ds_read_b64_tr_b16 v[{WF+4*ct+2}:{WF+4*ct+3}], v9 offset:{o+160}")
            k("s_waitcnt lgkmcnt(0)")
            for ct in range(2):
                acc = 32 + 4*ct
                c = "0" if ks == 0 else f"v[{acc}:{acc+3}]"
                w = f"v[{WF+4*ct}:{WF+4*ct+3}]"; x = f"v[{XF+4*ks}:{XF+4*ks+3}]"
                a, b = (x, w) if isV else (w, x)
                k(f"v_mfma_f32_16x16x32_bf16 v[{acc}:{acc+3}], {a}, {b}, {c}")
        k("s_nop 7\n s_nop 1")
    k(f"s_cmp_eq_u32 s36, 1\n s_cbranch_scc1 {lab_v}")
    kvloop(False)
    k(f"""v_cvt_pk_bf16_f32 v40, v32, v33
          v_cvt_pk_bf16_f32 v41, v34, v35
          v_cvt_pk_bf16_f32 v42, v36, v37
          v_cvt_pk_bf16_f32 v43, v38, v39
          v_lshlrev_b32 v10, 5, v6
          v_lshlrev_b32 v11, 3, v5
          v_add_u32 v10, v10, v11
          v_lshlrev_b32 v11, 3, v6
          buffer_store_dwordx2 v[40:41], v10, s[52:55], 0 offen
          v_cmp_gt_u32 vcc, 16, v2
          s_and_saveexec_b64 s[38:39], vcc
          buffer_store_dwordx2 v[42:43], v11, s[56:59], 0 offen
          s_mov_b64 exec, s[38:39]
          s_branch {lab_done}""")
    k.label(lab_v)
    kvloop(True)
    k(f"""v_cvt_pk_bf16_f32 v40, v32, v33
          v_cvt_pk_bf16_f32 v41, v34, v35
          v_cvt_pk_bf16_f32 v42, v36, v37
          v_cvt_pk_bf16_f32 v43, v38, v39
          v_and_b32 v10, 1, v5
          v_lshlrev_b32 v10, 3, v10
          v_lshrrev_b32 v11, 1, v5
          v_lshlrev_b32 v11, 2, v11
          v_add_u32 v10, v10, v11
          v_add_u32 v10, s34, v10
          v_lshlrev_b32 v10, 1, v10
          v_lshlrev_b32 v11, 12, v4
          v_add_u32 v10, v10, v11
          buffer_store_dwordx2 v[40:41], v10, s[60:63], 0 offen
          v_mov_b32 v12, 0x3f803f80
          v_cmp_eq_u32 vcc, 4, v4
          s_nop 1
          v_cndmask_b32 v42, v42, v12, vcc
          v_cndmask_b32 v43, v43, v12, vcc
          v_add_u32 v10, 0x10000, v10
          v_cmp_gt_u32 vcc, 5, v4
          s_and_saveexec_b64 s[38:39], vcc
          buffer_store_dwordx2 v[42:43], v10, s[60:63], 0 offen
          s_mov_b64 exec, s[38:39]""")
    k.label(lab_done)
    k.label("K1_END")
    k("s_endpgm")
    return k.text(), dict(vgpr=224, sgpr=72, lds=65536, grid=384, block=256)

def kernel_wrap(label, body, meta):
    v = meta['vgpr']
    s = f""".globl {label}
.p2align 8
.type {label},@function
{label}:
{body}"""
    kd = f""".p2align 6
.amdhsa_kernel {label}
  .amdhsa_next_free_vgpr {v}
  .amdhsa_next_free_sgpr {meta['sgpr']}
  .amdhsa_accum_offset {(v+3)//4*4}
  .amdhsa_group_segment_fixed_size 0
  .amdhsa_kernarg_size 112
  .amdhsa_user_sgpr_count 2
  .amdhsa_user_sgpr_kernarg_segment_ptr 1
  .amdhsa_system_sgpr_workgroup_id_x 1
.end_amdhsa_kernel
"""
    return s, kd

def main():
    ks = []
    ks.append(("k1_kernel",) + gen_k1())
    import gen2
    if hasattr(gen2, "gen_k2"): ks.append(("k2_kernel",) + gen2.gen_k2())
    if hasattr(gen2, "gen_k3"): ks.append(("k3_kernel",) + gen2.gen_k3())
    head = open(f"cdna_kernels/{NAME}.s.ref").read().split("; Override launch")[0]
    out = head
    for label, body, meta in ks:
        out += f"; @launch kernel={label} grid=({meta['grid']},1,1) block=({meta['block']},1,1) lds={meta['lds']}\n"
    out += '.amdgcn_target "amdgcn-amd-amdhsa--gfx950"\n.text\n'
    kds = ""
    for label, body, meta in ks:
        s, kd = kernel_wrap(label, body, meta)
        out += s; kds += kd
    out += '.section .rodata,"a"\n' + kds
    open(f"cdna_kernels/{NAME}.s", "w").write(out)

if __name__ == "__main__":
    main()
```

```python
from gen import *
import layout as L

KVB = 6656
NKV = 4
G0 = NKV * KVB
import os
STAMP = os.environ.get('STAMP')

class VM:
    def __init__(self): self.ops = []
    def add(self, tag, n=1): self.ops += [tag] * n
    def wait_for(self, tags):
        last = -1
        for i, t in enumerate(self.ops):
            if t in tags: last = i
        return len(self.ops) - 1 - last

def gen_k2(half=0):
    T = 'K2'
    NPH = 32
    k = K(); k.endl = f"{T}_END"
    prologue(k, 256)
    k(f"""s_load_dwordx2 s[20:21], s[0:1], {KOFF['ws']}
          s_load_dwordx2 s[4:5], s[0:1], {KOFF['w2' if half else 'w1']}
          s_load_dwordx2 s[6:7], s[0:1], {KOFF['b2' if half else 'b1']}
          s_waitcnt lgkmcnt(0)
          s_cmp_ge_u32 s3, 8
          s_cbranch_scc1 {T}_LOADER""")
    srd_off(k, 8, 20, 21, L.Q, 2048*640*2)
    srd_off(k, 12, 20, 21, L.O, 2048*640*2)
    srd_off(k, 16, 20, 21, L.PART, 256*8*13*256)
    if STAMP:
        k("s_memtime s[40:41]\n s_memrealtime s[48:49]")
    k("""s_lshr_b32 s22, s2, 3
         s_and_b32 s23, s2, 7
         s_lshl_b32 s23, s23, 8
         s_lshl_b32 s24, s3, 5
         s_add_u32 s23, s23, s24
         v_and_b32 v3, 31, v2
         v_lshrrev_b32 v4, 5, v2
         v_add_u32 v5, s23, v3
         s_mov_b32 s25, 1280
         v_mul_lo_u32 v5, v5, s25
         s_mul_i32 s24, s22, 40
         v_add_u32 v5, s24, v5
         s_lshl_b32 s24, s2, 3
         s_add_u32 s24, s24, s3
         s_mul_i32 s24, s24, 3328
         v_lshlrev_b32 v7, 2, v2""")
    Q1, Q2 = 8, 12
    KS_ = [14, 20]
    VF = 26
    S0, S1 = 42, 58
    O = 74
    CM = 90
    P = 106
    VT, VT2, VMX, VM_ = 114, 115, 116, 117
    ACUR, BCUR, ANXT, BNXT, LA, LB = 118, 119, 120, 121, 122, 123
    k(f"""v_lshlrev_b32 v6, 4, v4
          v_add_u32 v6, v5, v6
          buffer_load_dwordx2 v[{Q1}:{Q1+1}], v6, s[8:11], 0 offen
          buffer_load_dwordx2 v[{Q1+2}:{Q1+3}], v6, s[8:11], 0 offen offset:8
          buffer_load_dwordx2 v[{Q2}:{Q2+1}], v5, s[8:11], 0 offen offset:32""")
    if half:
        for i in range(12):
            k(f"buffer_load_dword v{O+i}, v7, s[16:19], s24 offen offset:{256*i}")
        k(f"buffer_load_dword v{CM}, v7, s[16:19], s24 offen offset:{256*12}")
    k(f"""v_lshlrev_b32 v{LA}, 9, v4
          v_lshlrev_b32 v6, 4, v3
          v_add_u32 v{LA}, v{LA}, v6
          v_lshlrev_b32 v{LB}, 3, v3
          v_mov_b32 v{ACUR}, v{LA}
          v_mov_b32 v{BCUR}, v{LB}
          v_add_u32 v{ANXT}, {KVB}, v{LA}
          v_add_u32 v{BNXT}, {KVB}, v{LB}
          s_mov_b32 s26, {KVB}
          s_mov_b32 s29, 0""")
    for i in range(16):
        if half and i < 12: continue
        k(f"v_mov_b32 v{O+i}, 0")
    for i in range(4):
        k(f"v_mov_b32 v{P+4+i}, 0")
        k(f"v_mov_b32 v{VF+12+i}, 0")
    k(f"""s_waitcnt vmcnt(0)
          v_cmp_gt_u32 vcc, 32, v2
          s_nop 1
          v_cndmask_b32 v{Q2}, 0, v{Q2}, vcc
          v_cndmask_b32 v{Q2+1}, 0, v{Q2+1}, vcc""")
    if half:
        for i in range(1, 16):
            k(f"v_mov_b32 v{CM+i}, v{CM}")
    k("s_barrier")
    def rdK(a, b, t, ks):
        r = KS_[ks]
        k(f"ds_read_b128 v[{r}:{r+3}], v{a} offset:{t*1024}")
        k(f"ds_read_b64 v[{r+4}:{r+5}], v{b} offset:{2048 + t*256}")
    def rdV(a, t, vs):
        for j in range(2):
            r = VF + 8*vs + 4*j
            k(f"ds_read_b128 v[{r}:{r+3}], v{a} offset:{2560 + (2*t+j)*1024}")
    def qk(i, S, ks, c=None):
        r = KS_[ks]
        c = c or f"v[{S}:{S+15}]"
        if i == 0: return f"v_mfma_f32_32x32x16_bf16 v[{S}:{S+15}], v[{r}:{r+3}], v[{Q1}:{Q1+3}], {c}"
        return f"v_mfma_f32_32x32x8_bf16 v[{S}:{S+15}], v[{r+4}:{r+5}], v[{Q2}:{Q2+1}], {c}"
    def maxtree(S, extra=None):
        s = lambda i: f"v{S+i}"
        k(f"""v_max3_f32 v{VMX}, {s(0)}, {s(1)}, {s(2)}
              v_max3_f32 v{VT}, {s(3)}, {s(4)}, {s(5)}
              v_max3_f32 v{VMX}, v{VMX}, {s(6)}, {s(7)}
              v_max3_f32 v{VT}, v{VT}, {s(8)}, {s(9)}
              v_max3_f32 v{VMX}, v{VMX}, {s(10)}, {s(11)}
              v_max3_f32 v{VT}, v{VT}, {s(12)}, {s(13)}
              v_max3_f32 v{VMX}, v{VMX}, {s(14)}, {s(15)}""")
        if extra: k(f"v_max3_f32 v{VMX}, v{VMX}, v{VT}, v{extra}")
        else: k(f"v_max_f32 v{VMX}, v{VMX}, v{VT}")
        k(f"""v_mov_b32 v{VT}, v{VMX}
              s_nop 1
              v_permlane32_swap_b32 v{VMX}, v{VT}
              v_max_f32 v{VMX}, v{VMX}, v{VT}""")
    if STAMP:
        k("s_memtime s[42:43]")
    rdK(ACUR, BCUR, 0, 0)
    rdK(ACUR, BCUR, 1, 1)
    rdV(ACUR, 0, 0)
    k("s_waitcnt lgkmcnt(4)")
    if not half:
        k(qk(0, S0, 0, "0")); k(qk(1, S0, 0))
        k("s_nop 7\n s_nop 4")
        maxtree(S0)
        for i in range(16):
            k(f"v_sub_f32 v{CM+i}, 0, v{VMX}")
        k("s_nop 1")
    k(qk(0, S0, 0, f"v[{CM}:{CM+15}]")); k(qk(1, S0, 0))
    k("s_nop 7\n s_nop 4")
    k.label(f"{T}_ALOOP")
    for t in range(2):
        Sc, Sn = (S0, S1) if t % 2 == 0 else (S1, S0)
        e = lambda i: k(f"v_exp_f32 v{Sc+i}, v{Sc+i}")
        c = lambda i: k(f"v_cvt_pk_bf16_f32 v{P+i}, v{Sc+2*i}, v{Sc+2*i+1}")
        vprev = VF + 8*((t+1) % 2); vcur = VF + 8*(t % 2)
        k("s_waitcnt lgkmcnt(2)")
        k(qk(0, Sn, (t+1) % 2, f"v[{CM}:{CM+15}]"))
        rdK(ANXT, BNXT, t, t % 2)
        for i in range(0, 5): e(i)
        k(f"v_mfma_f32_32x32x16_bf16 v[{O}:{O+15}], v[{vprev+4}:{vprev+7}], v[{P+4}:{P+7}], v[{O}:{O+15}]")
        if t == 0: rdV(ACUR, 1, 1)
        else: rdV(ANXT, 0, 0)
        for i in range(5, 8): e(i)
        k("s_nop 0")
        for i in range(0, 4): c(i)
        k(qk(1, Sn, (t+1) % 2))
        for i in range(8, 13): e(i)
        k("s_waitcnt lgkmcnt(4)")
        k(f"v_mfma_f32_32x32x16_bf16 v[{O}:{O+15}], v[{vcur}:{vcur+3}], v[{P}:{P+3}], v[{O}:{O+15}]")
        for i in range(13, 16): e(i)
        k("s_nop 0")
        for i in range(4, 8): c(i)
    k(f"""v_mov_b32 v{ACUR}, v{ANXT}
          v_mov_b32 v{BCUR}, v{BNXT}
          s_add_u32 s26, s26, {KVB}
          s_cmp_ge_u32 s26, {NKV*KVB}
          s_cselect_b32 s26, 0, s26
          v_add_u32 v{ANXT}, s26, v{LA}
          v_add_u32 v{BNXT}, s26, v{LB}
          s_add_u32 s29, s29, 1
          s_cmp_lt_u32 s29, {NPH}
          s_cbranch_scc0 {T}_AEND
          s_barrier
          s_branch {T}_ALOOP""")
    k.label(f"{T}_AEND")
    if STAMP:
        srd_off(k, 52, 20, 21, L.END + half*(1<<20), 1<<20)
        k(f"""s_memtime s[44:45]
              s_memrealtime s[50:51]
              s_waitcnt lgkmcnt(0)
              s_sub_u32 s42, s42, s40
              s_sub_u32 s44, s44, s40
              s_sub_u32 s50, s50, s48
              v_mov_b32 v{VT}, s42
              v_mov_b32 v{VT2}, s44
              v_mov_b32 v{VMX}, s50
              s_lshl_b32 s46, s2, 3
              s_add_u32 s46, s46, s3
              s_lshl_b32 s46, s46, 4
              v_mov_b32 v{VM_}, 0
              buffer_store_dword v{VT}, v{VM_}, s[52:55], s46 offen
              buffer_store_dword v{VT2}, v{VM_}, s[52:55], s46 offen offset:4
              buffer_store_dword v{VMX}, v{VM_}, s[52:55], s46 offen offset:8""")
    k(f"""v_mfma_f32_32x32x16_bf16 v[{O}:{O+15}], v[{VF+12}:{VF+15}], v[{P+4}:{P+7}], v[{O}:{O+15}]
          s_waitcnt lgkmcnt(0)
          s_nop 7
          s_nop 7""")
    if True:
        k.label(f"{T}_NORM")
        k(f"""v_mov_b32 v{VT}, v{O+8}
              v_mov_b32 v{VT2}, v{O+8}
              v_mov_b32 v{VM_}, 0x7149f2ca
              s_nop 1
              v_permlane32_swap_b32 v{VT}, v{VT2}
              s_cmp_eq_u32 s29, 99
              s_cbranch_scc1 {T}_NOCHK
              v_cmp_nlt_f32 vcc, v{VT2}, v{VM_}
              s_cbranch_vccnz {T}_FB""")
        k.label(f"{T}_NOCHK")
        k(f"v_rcp_f32 v{VT2}, v{VT2}\n s_nop 0")
        for i in range(12):
            k(f"v_mul_f32 v{O+i}, v{O+i}, v{VT2}")
        for i in range(6):
            k(f"v_cvt_pk_bf16_f32 v{P+i}, v{O+2*i}, v{O+2*i+1}")
        k(f"""v_lshlrev_b32 v6, 3, v4
              v_add_u32 v6, v5, v6
              buffer_store_dwordx2 v[{P}:{P+1}], v6, s[12:15], 0 offen
              buffer_store_dwordx2 v[{P+2}:{P+3}], v6, s[12:15], 0 offen offset:16
              v_cmp_gt_u32 vcc, 32, v2
              s_and_saveexec_b64 s[30:31], vcc
              buffer_store_dwordx2 v[{P+4}:{P+5}], v5, s[12:15], 0 offen offset:32
              s_endpgm""")
        k.label(f"{T}_FB")
        srd_off(k, 32, 20, 21, L.KA, 2048*32)
        srd_off(k, 36, 20, 21, L.VT, 21*4096)
        srd_off(k, 40, 20, 21, L.KB, 2048*8)
        r = KS_[0]
        k(f"""v_lshlrev_b32 v{BCUR}, 5, v3
              v_lshlrev_b32 v6, 4, v4
              v_add_u32 v{BCUR}, v{BCUR}, v6
              v_lshlrev_b32 v{ACUR}, 3, v3
              v_lshlrev_b32 v{ANXT}, 12, v3
              v_add_u32 v{ANXT}, v{ANXT}, v6
              v_mov_b32 v{VM_}, 0xf149f2ca
              s_mov_b32 s29, 0""")
        for i in range(16): k(f"v_mov_b32 v{O+i}, 0")
        k.label(f"{T}_FBL")
        k(f"""s_lshl_b32 s30, s29, 10
              s_lshl_b32 s31, s29, 6
              s_lshl_b32 s28, s29, 8
              buffer_load_dwordx4 v[{r}:{r+3}], v{BCUR}, s[32:35], s30 offen
              buffer_load_dwordx2 v[{r+4}:{r+5}], v{ACUR}, s[40:43], s28 offen
              buffer_load_dwordx4 v[{VF}:{VF+3}], v{ANXT}, s[36:39], s31 offen
              buffer_load_dwordx4 v[{VF+4}:{VF+7}], v{ANXT}, s[36:39], s31 offen offset:32
              s_waitcnt vmcnt(0)""")
        k(qk(0, S0, 0, "0")); k(qk(1, S0, 0))
        k("s_nop 7\n s_nop 7")
        maxtree(S0, VM_)
        k(f"""v_sub_f32 v{VT}, v{VM_}, v{VMX}
              v_exp_f32 v{VT}, v{VT}
              v_mov_b32 v{VM_}, v{VMX}""")
        for i in range(12): k(f"v_mul_f32 v{O+i}, v{O+i}, v{VT}")
        for i in range(16):
            k(f"v_sub_f32 v{S0+i}, v{S0+i}, v{VM_}")
            k(f"v_exp_f32 v{S0+i}, v{S0+i}")
        k("s_nop 0")
        for i in range(8): k(f"v_cvt_pk_bf16_f32 v{P+i}, v{S0+2*i}, v{S0+2*i+1}")
        k(f"""s_nop 1
              v_mfma_f32_32x32x16_bf16 v[{O}:{O+15}], v[{VF}:{VF+3}], v[{P}:{P+3}], v[{O}:{O+15}]
              v_mfma_f32_32x32x16_bf16 v[{O}:{O+15}], v[{VF+4}:{VF+7}], v[{P+4}:{P+7}], v[{O}:{O+15}]
              s_nop 7
              s_nop 7
              s_add_u32 s29, s29, 1
              s_cmp_lt_u32 s29, 64
              s_cbranch_scc1 {T}_FBL
              s_mov_b32 s29, 99
              s_branch {T}_NORM""")
    k.label(f"{T}_LOADER")
    k("s_sub_u32 s3, s3, 8\n s_setprio 3")
    srd_off(k, 8, 20, 21, L.KA, 2048*32)
    srd_off(k, 12, 20, 21, L.KB, 2048*8)
    srd_off(k, 16, 20, 21, L.VT, 21*4096)
    KS = 128
    TS = 64 * KS * 2
    STG = 2 * TS
    NG = 3
    if not half:
        NT = 30; NSTEP = 16
        srd_off(k, 40, 20, 21, L.H, 2048*640*2)
        srd(k, 44, 4, 5, 2048*1536*2)
        srd(k, 48, 6, 7, 1536*2)
        srd_off(k, 52, 20, 21, L.U, 640*1536*2)
        k(f"""s_and_b32 s60, s2, 7
              s_lshr_b32 s61, s2, 3
              s_mul_hi_u32 s22, s61, 0x2aaaaaab
              s_mul_i32 s23, s22, 6
              s_sub_u32 s23, s61, s23
              s_lshr_b32 s34, s60, 2
              s_mul_i32 s34, s34, 5
              s_add_u32 s22, s22, s34
              s_and_b32 s34, s60, 3
              s_mul_i32 s34, s34, 6
              s_add_u32 s23, s23, s34
              s_mov_b32 s24, 3072
              s_mov_b32 s25, 1280
              s_mul_i32 s31, s3, {4*8*3072}
              s_lshl_b32 s34, s23, 7
              s_add_u32 s31, s31, s34
              s_mul_i32 s32, s3, {4*8*1280}
              s_lshl_b32 s34, s22, 7
              s_add_u32 s32, s32, s34
              s_lshl_b32 s33, s3, 12
              s_and_b32 s35, s3, 1
              s_lshr_b32 s36, s3, 1
              s_mov_b32 s37, s35
              s_mov_b32 s38, s36""")
        tr_voff(k, 3, 2, 24, 10, 11)
        tr_voff(k, 4, 2, 25, 10, 11)
        tr_rd(k, 6, 2, 37, 10, 11)
        tr_rd(k, 7, 2, 38, 10, 11)
        k(f"v_add_u32 v6, {G0}, v6\n v_add_u32 v7, {G0}, v7\n v_add_u32 v12, 0x10000, v6\n v_add_u32 v13, 0x10000, v7")
        opM = Opnd('tr', 44, 3072, [3], 31, 6)
        opN = Opnd('tr', 40, 1280, [4], 32, 7)
        opM2 = Opnd('tr', 44, 3072, [3], 31, 12)
        opN2 = Opnd('tr', 40, 1280, [4], 32, 13)
        ACC = 16; FM = 32; FN = 44
    else:
        NT = 20; NSTEP = 12
        srd_off(k, 40, 20, 21, L.U, 640*1536*2)
        srd(k, 44, 4, 5, 1536*2048*2)
        srd(k, 48, 6, 7, 2048*2)
        srd_off(k, 52, 20, 21, L.BB, 2048*640*2)
        k(f"""s_and_b32 s60, s2, 7
              s_lshr_b32 s61, s2, 3
              s_mul_hi_u32 s22, s61, 0x33333334
              s_mul_i32 s23, s22, 5
              s_sub_u32 s23, s61, s23
              s_and_b32 s34, s60, 3
              s_lshl_b32 s34, s34, 2
              s_add_u32 s22, s22, s34
              s_lshr_b32 s34, s60, 2
              s_mul_i32 s34, s34, 5
              s_add_u32 s23, s23, s34
              s_mov_b32 s24, 3072
              s_mov_b32 s25, 4096
              s_and_b32 s35, s3, 1
              s_lshr_b32 s36, s3, 1
              s_lshl_b32 s31, s23, 6
              s_lshl_b32 s34, s3, 4
              s_add_u32 s31, s31, s34
              s_mul_i32 s31, s31, 3072
              s_lshl_b32 s32, s3, 17
              s_lshl_b32 s34, s22, 8
              s_add_u32 s32, s32, s34
              s_add_u32 s56, s32, 128
              s_lshl_b32 s33, s3, 12
              s_mov_b32 s38, 0""")
        tr_voff(k, 4, 2, 25, 10, 11)
        tr_rd(k, 7, 2, 38, 10, 11)
        k(f"""s_lshl_b32 s34, s36, 14
              s_add_u32 s34, s34, {G0}
              v_add_u32 v7, s34, v7
              v_xor_b32 v14, 64, v7
              v_add_u32 v12, 0x10000, v7
              v_add_u32 v13, 0x10000, v14
              s_mov_b32 s37, s35""")
        dir_voff128(k, [60+16, 61+16, 62+16, 63+16], 2, 24, 10, 11)
        dir_rd(k, 6, 2, 37, KS, 10, 11)
        U0 = G0 + NG*STG
        k(f"v_add_u32 v6, {U0}, v6")
        opU = Opnd('dir', 40, 3072, [76, 77, 78, 79], 31, 6)
        opN0 = Opnd('tr', 44, 4096, [4], 32, 7)
        opN1 = Opnd('tr', 44, 4096, [4], 56, 7)
        opNa = Opnd('tr', 44, 4096, [4], 32, 7)
        opNb = Opnd('tr', 44, 4096, [4], 32, 14)
        opNa2 = Opnd('tr', 44, 4096, [4], 32, 12)
        opNb2 = Opnd('tr', 44, 4096, [4], 32, 13)
        ACC = 16; ACC2 = 32; FN = 48; FN2 = 60; FM = 80
    k("""v_and_b32 v10, 31, v2
         v_lshrrev_b32 v11, 5, v2
         v_lshlrev_b32 v11, 4, v11
         v_lshlrev_b32 v8, 5, v10
         v_add_u32 v8, v8, v11
         v_lshlrev_b32 v9, 4, v2
         v_lshlrev_b32 v5, 12, v10
         v_add_u32 v5, v5, v11
         s_lshl_b32 s58, s3, 10
         s_lshl_b32 s59, s3, 5""")
    def kv_dma(c):
        slot = (c % NKV) * KVB
        cg = half * 16 + c
        l1 = k.new(f"{T}_KB"); l2 = k.new(f"{T}_KD")
        k(f"""s_add_u32 m0, s58, {slot + 2560}
              s_add_u32 s34, s59, {cg*128}
              buffer_load_dwordx4 v5, s[16:19], s34 offen lds
              s_cmp_ge_u32 s3, 2
              s_cbranch_scc1 {l1}
              s_add_u32 m0, s58, {slot}
              s_add_u32 s34, s58, {cg*2048}
              buffer_load_dwordx4 v8, s[8:11], s34 offen lds
              s_branch {l2}""")
        k.label(l1)
        k(f"""s_mov_b32 m0, {slot + 2048}
              s_mov_b32 s34, {cg*512}
              s_mov_b64 exec, 0xffffffff
              buffer_load_dwordx4 v9, s[12:15], s34 offen lds
              s_mov_b64 exec, -1""")
        k.label(l2)
    def g_dma(t):
        b = G0 + (t % NG) * STG
        if not half:
            dma_tile(k, opM, KS, t*KS, b, 33, 34)
            dma_tile(k, opN, KS, t*KS, b + TS, 33, 34)
            return 8
        dma_tile(k, opN0, KS, t*KS, b, 33, 34)
        dma_tile(k, opN1, KS, t*KS, b + TS, 33, 34)
        return 8
    def u_dma(t):
        dma_tile(k, opU, KS, t*KS, U0 + (t % 2)*TS, 33, 34)
        return 4
    nk = KS // 16
    def epilogue_u():
        k(f"""v_and_b32 v10, 31, v2
              s_lshl_b32 s34, s22, 6
              s_lshl_b32 s39, s36, 5
              s_add_u32 s34, s34, s39
              v_add_u32 v10, s34, v10
              v_mul_lo_u32 v10, v10, s24
              v_lshrrev_b32 v11, 5, v2
              v_lshlrev_b32 v11, 3, v11
              s_lshl_b32 s34, s23, 7
              s_lshl_b32 s39, s35, 6
              s_add_u32 s34, s34, s39
              v_add_u32 v11, s34, v11
              v_add_u32 v10, v10, v11""")
        for j in range(4):
            k(f"buffer_load_dwordx2 v[{56+2*j}:{57+2*j}], v11, s[48:51], 0 offen offset:{16*j}")
        k("s_mov_b32 s34, 0x3d372713\n s_mov_b32 s39, 0xc0135761\n s_waitcnt vmcnt(0)\n s_nop 7")
        for j in range(4):
            for h2 in range(2):
                a = ACC + 4*j + 2*h2; br = 56 + 2*j + h2
                k(f"""v_cvt_pk_bf16_f32 v64, v{a}, v{a+1}
                      v_lshlrev_b32 v65, 16, v64
                      v_and_b32 v64, 0xffff0000, v64
                      v_lshlrev_b32 v66, 16, v{br}
                      v_and_b32 v67, 0xffff0000, v{br}
                      v_add_f32 v65, v65, v66
                      v_add_f32 v64, v64, v67
                      v_cvt_pk_bf16_f32 v64, v65, v64
                      v_lshlrev_b32 v65, 16, v64
                      v_and_b32 v64, 0xffff0000, v64
                      v_mul_f32 v66, v65, v65
                      v_mul_f32 v67, v64, v64
                      v_fma_f32 v66, v66, s34, 1.0
                      v_fma_f32 v67, v67, s34, 1.0
                      v_mul_f32 v66, v66, v65
                      v_mul_f32 v67, v67, v64
                      v_mul_f32 v66, s39, v66
                      v_mul_f32 v67, s39, v67
                      v_exp_f32 v66, v66
                      v_exp_f32 v67, v67
                      s_nop 0
                      v_add_f32 v66, 1.0, v66
                      v_add_f32 v67, 1.0, v67
                      v_rcp_f32 v66, v66
                      v_rcp_f32 v67, v67
                      s_nop 0
                      v_mul_f32 v66, v66, v65
                      v_mul_f32 v67, v67, v64
                      v_cvt_pk_bf16_f32 v{68+2*j+h2}, v66, v67""")
        for j in range(4):
            k(f"buffer_store_dwordx2 v[{68+2*j}:{69+2*j}], v10, s[52:55], 0 offen offset:{16*j}")
    def epilogue_y():
        k(f"""v_and_b32 v10, 31, v2
              s_lshl_b32 s34, s22, 7
              s_lshl_b32 s39, s36, 6
              s_add_u32 s34, s34, s39
              v_add_u32 v10, s34, v10
              v_lshlrev_b32 v12, 1, v10
              buffer_load_ushort v72, v12, s[48:51], 0 offen
              buffer_load_ushort v73, v12, s[48:51], 0 offen offset:64
              s_mov_b32 s39, 1280
              v_mul_lo_u32 v10, v10, s39
              v_lshrrev_b32 v11, 5, v2
              v_lshlrev_b32 v11, 3, v11
              s_lshl_b32 s34, s23, 7
              s_lshl_b32 s39, s35, 6
              s_add_u32 s34, s34, s39
              v_add_u32 v11, s34, v11
              v_add_u32 v10, v10, v11
              v_add_u32 v11, {32*1280}, v10
              s_waitcnt vmcnt(0)
              v_lshlrev_b32 v72, 16, v72
              v_lshlrev_b32 v73, 16, v73
              s_nop 7""")
        for a_i, (ab, b2r, ad) in enumerate(((ACC, 72, 10), (ACC2, 73, 11))):
            for j in range(4):
                for h2 in range(2):
                    a = ab + 4*j + 2*h2
                    k(f"""v_cvt_pk_bf16_f32 v96, v{a}, v{a+1}
                          v_lshlrev_b32 v97, 16, v96
                          v_and_b32 v96, 0xffff0000, v96
                          v_add_f32 v97, v97, v{b2r}
                          v_add_f32 v96, v96, v{b2r}
                          v_cvt_pk_bf16_f32 v{100+8*a_i+2*j+h2}, v97, v96""")
            for j in range(4):
                r = 100 + 8*a_i + 2*j
                k(f"buffer_store_dwordx2 v[{r}:{r+1}], v{ad}, s[52:55], 0 offen offset:{16*j}")
    k(f"s_cmp_ge_u32 s61, {NT}\n s_cbranch_scc1 {T}_KVONLY")
    for gemm in (True, False):
        if not gemm: k.label(f"{T}_KVONLY")
        vm = VM()
        def KV(c):
            kv_dma(c); vm.add(("kv", c), 2)
        def G(t):
            vm.add(("g", t), g_dma(t))
        def UU(t):
            vm.add(("u", t), u_dma(t))
        KV(0); KV(1)
        if gemm: G(0)
        KV(2)
        if gemm: G(1)
        for ph in range(NPH):
            p = ph // 2 if ph % 2 == 0 else 99
            need = [("kv", ph), ("kv", min(ph + 1, NPH - 1))]
            if gemm and p < NSTEP: need += [("g", p)]
            if STAMP and gemm and ph < 16:
                k(f"s_memtime s[62:63]\n s_waitcnt lgkmcnt(0)\n v_writelane_b32 v123, s62, {3*ph}")
                k(f"s_waitcnt vmcnt({vm.wait_for(need)})")
                k(f"s_memtime s[62:63]\n s_waitcnt lgkmcnt(0)\n v_writelane_b32 v123, s62, {3*ph+1}")
                k("s_barrier")
                k(f"s_memtime s[62:63]\n s_waitcnt lgkmcnt(0)\n v_writelane_b32 v123, s62, {3*ph+2}")
            else:
                k(f"s_waitcnt vmcnt({vm.wait_for(need)})\n s_barrier")
            save = k.L; k.L = []
            if ph + 3 < NPH: KV(ph + 3)
            if gemm and p + 2 < NSTEP: G(p + 2)
            lines = k.L; k.L = save
            chunks = []; cur = []; inbr = False
            for ln in lines:
                cur.append(ln)
                if "s_cbranch_scc1" in ln: inbr = True
                if ln.endswith(":") and "_KD" in ln: inbr = False; chunks.append(cur); cur = []; continue
                if "buffer_load" in ln and not inbr:
                    chunks.append(cur); cur = []
            assert not cur
            def emit_chunks(n):
                for _ in range(n):
                    if chunks: k.L += chunks.pop(0)
            if gemm and p < NSTEP:
                b = (p % NG) * STG
                cnt = []
                hi = b >= 65536
                bo = b - 65536 if hi else b
                def rd(kk):
                    if not half:
                        c = frag_read(k, opM2 if hi else opM, KS, kk, bo, FM + 4*(kk % 3), 0)
                        c += frag_read(k, opN2 if hi else opN, KS, kk, bo + TS, FN + 4*(kk % 3), 0)
                    else:
                        c = frag_read(k, opU, KS, kk, (p % 2)*TS, FM + 4*(kk % 3), 15)
                        c += frag_read(k, opNa2 if hi else opNa, KS, kk, bo, FN + 4*(kk % 3), 0)
                        c += frag_read(k, opNb2 if hi else opNb, KS, kk, bo, FN2 + 4*(kk % 3), 0)
                    cnt.append(c)
                rd(0); rd(1)
                emit_chunks(2)
                for kk in range(nk):
                    if kk + 2 < nk: rd(kk + 2)
                    k(f"s_waitcnt lgkmcnt({sum(cnt[kk+1:])})")
                    bb = FN + 4*(kk % 3)
                    c = "0" if (p == 0 and kk == 0) else f"v[{ACC}:{ACC+15}]"
                    a = FM + 4*(kk % 3)
                    k(f"v_mfma_f32_32x32x16_bf16 v[{ACC}:{ACC+15}], v[{a}:{a+3}], v[{bb}:{bb+3}], {c}")
                    if half:
                        b2_ = FN2 + 4*(kk % 3)
                        c = "0" if (p == 0 and kk == 0) else f"v[{ACC2}:{ACC2+15}]"
                        k(f"v_mfma_f32_32x32x16_bf16 v[{ACC2}:{ACC2+15}], v[{a}:{a+3}], v[{b2_}:{b2_+3}], {c}")
                    emit_chunks(2 if half else 1)
                emit_chunks(99)
                if p == NSTEP - 1:
                    epilogue_y() if half else epilogue_u()
                    vm.ops = []
            else:
                emit_chunks(99)
        if STAMP and gemm:
            srd_off(k, 52, 20, 21, L.END + (2+half)*(1<<20), 1<<20)
            k(f"""s_lshl_b32 s34, s2, 2
                  s_add_u32 s34, s34, s3
                  s_lshl_b32 s34, s34, 8
                  v_lshlrev_b32 v10, 2, v2
                  buffer_store_dword v123, v10, s[52:55], s34 offen""")
        k("s_endpgm")
    k.label(f"{T}_END")
    k("s_endpgm")
    return k.text(), dict(vgpr=124, sgpr=64, lds=G0 + NG*STG + (2*TS if half else 0), grid=256, block=768)

def gen_k3():
    k = K(); k.endl = "K3_END"
    prologue(k, 320)
    k(f"""s_load_dwordx2 s[20:21], s[0:1], {KOFF['ws']}
          s_load_dwordx2 s[4:5], s[0:1], {KOFF['wo']}
          s_load_dwordx2 s[24:25], s[0:1], {KOFF['out']}
          s_waitcnt lgkmcnt(0)""")
    srd(k, 8, 4, 5, 640*640*2)
    srd_off(k, 12, 20, 21, L.O, 2048*640*2)
    srd_off(k, 16, 20, 21, L.BB, 2048*640*2)
    srd_off(k, 48, 20, 21, L.G, 2048*4)
    srd(k, 52, 24, 25, 2048*640*2)
    KS, NS = 64, 4
    ipw = 2
    k(f"""s_and_b32 s60, s2, 7
          s_lshr_b32 s61, s2, 3
          s_mul_hi_u32 s28, s61, 0x33333334
          s_mul_i32 s29, s28, 5
          s_sub_u32 s29, s61, s29
          s_and_b32 s34, s60, 3
          s_lshl_b32 s34, s34, 3
          s_add_u32 s28, s28, s34
          s_lshr_b32 s34, s60, 2
          s_mul_i32 s34, s34, 5
          s_add_u32 s29, s29, s34
          s_mov_b32 s30, 1280
          s_lshl_b32 s33, s3, 11
          s_and_b32 s35, s3, 1
          s_lshr_b32 s36, s3, 1
          s_mul_i32 s58, s3, {ipw*8*1280}
          s_lshl_b32 s34, s29, 7
          s_add_u32 s58, s58, s34
          s_lshl_b32 s59, s28, 6
          s_mul_i32 s34, s3, {ipw*8}
          s_add_u32 s59, s59, s34
          s_mul_i32 s59, s59, 1280""")
    tr_voff(k, 3, 2, 30, 10, 11)
    dir_voff64(k, [4, 5], 2, 30, 10, 11)
    k("s_mov_b32 s37, s35"); tr_rd(k, 6, 2, 37, 10, 11)
    k("s_mov_b32 s37, s36"); dir_rd(k, 9, 2, 37, KS, 10, 11)
    opWo = Opnd('tr', 8, 1280, [3], 58, 6)
    opO = Opnd('dir', 12, 1280, [4, 5], 59, 9)
    AA = 16
    k(f"""v_and_b32 v10, 31, v2
          s_lshl_b32 s34, s28, 6
          s_lshl_b32 s39, s36, 5
          s_add_u32 s34, s34, s39
          v_add_u32 v10, s34, v10
          v_lshlrev_b32 v11, 2, v10
          buffer_load_dword v60, v11, s[48:51], 0 offen
          v_mul_lo_u32 v10, v10, s30
          v_lshrrev_b32 v11, 5, v2
          v_lshlrev_b32 v11, 3, v11
          v_add_u32 v10, v10, v11
          s_lshl_b32 s34, s29, 7
          s_lshl_b32 s39, s35, 6
          s_add_u32 s34, s34, s39
          v_add_u32 v61, s34, v10""")
    for j in range(4):
        k(f"buffer_load_dwordx2 v[{64+2*j}:{65+2*j}], v61, s[16:19], 0 offen offset:{16*j}")
    k("s_waitcnt vmcnt(0)")
    steps = [(opWo, opO, t*KS, t*KS, AA, t == 0) for t in range(640 // KS)]
    gemm_ring(k, steps, KS, NS, 0, 33, 34, 32, 44, 12)
    k(f"""v_sub_f32 v15, 1.0, v60
          v_cvt_pk_bf16_f32 v15, v15, v15
          v_and_b32 v15, 0xffff0000, v15
          s_nop 7
          s_nop 3""")
    for j in range(4):
        for h2 in range(2):
            a = AA + 4*j + 2*h2; b = 64 + 2*j + h2
            k(f"""v_cvt_pk_bf16_f32 v56, v{a}, v{a+1}
                  v_lshlrev_b32 v58, 16, v56
                  v_and_b32 v56, 0xffff0000, v56
                  v_lshlrev_b32 v59, 16, v{b}
                  v_and_b32 v57, 0xffff0000, v{b}
                  v_mul_f32 v58, v58, v60
                  v_mul_f32 v56, v56, v60
                  v_mul_f32 v59, v59, v15
                  v_mul_f32 v57, v57, v15
                  v_cvt_pk_bf16_f32 v56, v58, v56
                  v_cvt_pk_bf16_f32 v57, v59, v57
                  v_lshlrev_b32 v58, 16, v56
                  v_and_b32 v56, 0xffff0000, v56
                  v_lshlrev_b32 v59, 16, v57
                  v_and_b32 v57, 0xffff0000, v57
                  v_add_f32 v58, v58, v59
                  v_add_f32 v56, v56, v57
                  v_cvt_pk_bf16_f32 v{84+2*j+h2}, v58, v56""")
    for j in range(4):
        k(f"buffer_store_dwordx2 v[{84+2*j}:{85+2*j}], v61, s[52:55], 0 offen offset:{16*j}")
    k.label("K3_END")
    k("s_endpgm")
    return k.text(), dict(vgpr=96, sgpr=72, lds=NS*2*64*KS*2, grid=320, block=256)
```

```python
from gen import *
import layout as L
from gen2 import VM

def gen_k3():
    k = K(); k.endl = "K3_END"
    prologue(k, 256)
    k(f"""s_load_dwordx2 s[20:21], s[0:1], {KOFF['ws']}
          s_load_dwordx2 s[4:5], s[0:1], {KOFF['wo']}
          s_load_dwordx2 s[6:7], s[0:1], {KOFF['w2']}
          s_load_dwordx2 s[22:23], s[0:1], {KOFF['b2']}
          s_load_dwordx2 s[24:25], s[0:1], {KOFF['out']}
          s_waitcnt lgkmcnt(0)""")
    srd(k, 8, 4, 5, 640*640*2)
    srd_off(k, 12, 20, 21, L.O, 2048*640*2)
    srd_off(k, 16, 20, 21, L.U, 640*1536*2)
    srd(k, 40, 6, 7, 1536*2048*2)
    srd(k, 44, 22, 23, 2048*2)
    srd_off(k, 48, 20, 21, L.G, 2048*4)
    srd(k, 52, 24, 25, 2048*640*2)
    KS, NS = 128, 4
    TA, TB = 20480, 16384
    STG = TA + TB
    k(f"""s_and_b32 s60, s2, 7
          s_lshr_b32 s61, s2, 3
          s_lshr_b32 s28, s61, 2
          s_and_b32 s29, s61, 3
          s_and_b32 s34, s60, 3
          s_lshl_b32 s34, s34, 3
          s_add_u32 s28, s28, s34
          s_lshr_b32 s34, s60, 2
          s_lshl_b32 s34, s34, 2
          s_add_u32 s29, s29, s34
          s_mov_b32 s30, 1280
          s_mov_b32 s56, 3072
          s_mov_b32 s57, 4096
          v_and_b32 v4, 15, v2
          v_lshrrev_b32 v5, 4, v2""")
    for j in range(5):
        d = 60 + j
        k(f"""v_add_u32 v10, {64*j}, v2
              v_mul_u32_u24 v11, 0x199a, v10
              v_lshrrev_b32 v11, 16, v11
              v_mul_u32_u24 v12, 10, v11
              v_sub_u32 v12, v10, v12
              v_and_b32 v13, 0x13, v11
              v_and_b32 v14, 4, v11
              v_lshlrev_b32 v14, 1, v14
              v_or_b32 v13, v13, v14
              v_and_b32 v14, 8, v11
              v_lshrrev_b32 v14, 1, v14
              v_or_b32 v13, v13, v14
              v_mul_lo_u32 v13, v13, s30
              v_lshlrev_b32 v12, 4, v12
              v_add_u32 v{d}, v13, v12""")
    k("s_mul_i32 s35, s3, 20")
    for j in range(5):
        d = 65 + j
        k(f"""v_add_u32 v10, {4*j}, v5
              v_add_u32 v11, s35, v10
              v_and_b32 v11, 15, v11
              v_xor_b32 v11, v11, v4
              v_lshlrev_b32 v11, 4, v11
              v_mul_lo_u32 v10, v10, s56
              v_add_u32 v{d}, v10, v11""")
    dir_voff128(k, [70, 71, 72, 73], 2, 30, 10, 11)
    for par in range(2):
        d = 74 + par
        k(f"""v_lshrrev_b32 v10, 3, v2
              v_mul_lo_u32 v10, v10, s57
              v_lshrrev_b32 v11, 4, v2
              v_and_b32 v11, 1, v11
              v_lshlrev_b32 v11, 2, v11
              v_and_b32 v12, 7, v2
              v_xor_b32 v12, v12, v11
              v_xor_b32 v12, {2*par}, v12
              v_lshlrev_b32 v12, 4, v12
              v_add_u32 v{d}, v12, v10""")
    k(f"""s_mul_i32 s58, s3, {32*1280}
          s_mul_i32 s34, s29, 160
          s_add_u32 s58, s58, s34
          s_mul_i32 s59, s29, 80
          s_add_u32 s59, s59, s35
          s_mul_i32 s59, s59, 3072
          s_lshl_b32 s62, s28, 6
          s_lshl_b32 s34, s3, 4
          s_add_u32 s62, s62, s34
          s_mul_i32 s62, s62, 1280
          s_lshl_b32 s63, s3, 17
          s_lshl_b32 s34, s28, 7
          s_add_u32 s63, s63, s34
          s_mul_i32 s64, s3, 5120
          s_lshl_b32 s65, s3, 12""")
    k(f"""v_lshrrev_b32 v10, 1, v5
          v_lshlrev_b32 v10, 4, v10
          v_and_b32 v11, 1, v5
          v_lshlrev_b32 v11, 2, v11
          v_add_u32 v10, v10, v11
          v_lshrrev_b32 v11, 2, v4
          v_add_u32 v10, v10, v11
          v_mul_u32_u24 v10, 160, v10
          v_and_b32 v11, 3, v4
          v_lshlrev_b32 v11, 3, v11
          v_add_u32 v6, v10, v11""")
    k(f"""v_xor_b32 v10, v5, v4
          v_lshlrev_b32 v10, 4, v10
          v_lshlrev_b32 v11, 8, v4
          v_add_u32 v7, v10, v11""")
    k(f"v_add_u32 v8, s65, v7")
    k(f"""v_and_b32 v10, 3, v4
          v_lshlrev_b32 v10, 3, v10
          s_lshl_b32 s34, s3, 5
          v_add_u32 v10, s34, v10
          v_lshrrev_b32 v11, 3, v4
          v_lshlrev_b32 v11, 6, v11
          v_xor_b32 v10, v10, v11
          v_and_b32 v11, 1, v5
          v_lshlrev_b32 v11, 5, v11
          v_xor_b32 v10, v10, v11
          v_lshlrev_b32 v11, 3, v5
          v_lshrrev_b32 v12, 2, v4
          v_add_u32 v11, v11, v12
          v_lshlrev_b32 v11, 7, v11
          v_add_u32 v9, v10, v11""")
    NA = 5; NB = 12
    steps = [("A", t) for t in range(NA)] + [("B", t) for t in range(NB)]
    vm = VM()
    def issue(i):
        part, t = steps[i]
        b = (i % NS) * STG
        chunks = []
        if part == "A":
            for j in range(5):
                chunks.append(f"""s_add_u32 m0, s64, {b + j*1024}
                      s_add_u32 s34, s58, {t*KS*1280}
                      buffer_load_dwordx4 v{60+j}, s[8:11], s34 offen lds""")
            for j in range(4):
                chunks.append(f"""s_add_u32 m0, s65, {b + TA + j*1024}
                      s_add_u32 s34, s62, {4*j*1280 + t*KS*2}
                      buffer_load_dwordx4 v{70+j}, s[12:15], s34 offen lds""")
        else:
            for j in range(5):
                chunks.append(f"""s_add_u32 m0, s64, {b + j*1024}
                      s_add_u32 s34, s59, {t*KS*2}
                      buffer_load_dwordx4 v{65+j}, s[16:19], s34 offen lds""")
            for j in range(4):
                chunks.append(f"""s_add_u32 m0, s65, {b + TA + j*1024}
                      s_add_u32 s34, s63, {(t*KS + 8*j)*4096}
                      buffer_load_dwordx4 v{74+(j%2)}, s[40:43], s34 offen lds""")
        vm.add(i, 9)
        return chunks
    k(f"""s_lshl_b32 s34, s28, 6
          s_lshl_b32 s39, s3, 4
          s_add_u32 s34, s34, s39
          v_add_u32 v10, s34, v4
          v_lshlrev_b32 v11, 2, v10
          v_lshlrev_b32 v12, 1, v10
          buffer_load_dword v80, v11, s[48:51], 0 offen
          buffer_load_ushort v81, v12, s[44:47], 0 offen
          v_mul_lo_u32 v10, v10, s30
          v_lshlrev_b32 v11, 3, v5
          v_add_u32 v10, v10, v11
          s_mul_i32 s34, s29, 160
          v_add_u32 v82, s34, v10""")
    vm.add("epi", 2)
    for i in range(NS - 1):
        for c in issue(i): k(c)
    AA, AB = 16, 36
    FA, FB = 84, 124
    n = len(steps)
    for i in range(n):
        part, t = steps[i]
        k(f"s_waitcnt vmcnt({vm.wait_for([i])})\n s_barrier")
        chunks = issue(i + NS - 1) if i + NS - 1 < n else []
        b = (i % NS) * STG
        bo = 0
        ra0, rb0 = ((6, 8) if part == "A" else (7, 9))
        k(f"v_add_u32 v76, {b}, v{ra0}\n v_add_u32 v77, {b}, v{rb0}")
        ra, rb_ = 76, 77
        acc = AA if part == "A" else AB
        cnt = []
        def rd(kk):
            fa = FA + 20*(kk % 2); fb = FB + 4*(kk % 2)
            c = 0
            if part == "A":
                if kk: k(f"v_xor_b32 v15, {kk*64}, v{rb_}")
                k(f"ds_read_b128 v[{fb}:{fb+3}], v{15 if kk else rb_} offset:{bo + TA}"); c += 1
                for mt in range(5):
                    for rdi in range(2):
                        k(f"ds_read_b64_tr_b16 v[{fa+4*mt+2*rdi}:{fa+4*mt+2*rdi+1}], v{ra} offset:{bo + (32*kk + 8*rdi)*160 + mt*32}"); c += 1
            else:
                for rdi in range(2):
                    k(f"ds_read_b64_tr_b16 v[{fb+2*rdi}:{fb+2*rdi+1}], v{rb_} offset:{bo + TA + (32*kk + 4*rdi)*128}"); c += 1
                if kk: k(f"v_xor_b32 v15, {kk*64}, v{ra}")
                for mt in range(5):
                    k(f"ds_read_b128 v[{fa+4*mt}:{fa+4*mt+3}], v{15 if kk else ra} offset:{bo + mt*4096}"); c += 1
            cnt.append(c)
        rd(0)
        for kk in range(4):
            if kk + 1 < 4: rd(kk + 1)
            k(f"s_waitcnt lgkmcnt({sum(cnt[kk+1:])})")
            fa = FA + 20*(kk % 2); fb = FB + 4*(kk % 2)
            for mt in range(5):
                a = acc + 4*mt
                c = "0" if (t == 0 and kk == 0) else f"v[{a}:{a+3}]"
                k(f"v_mfma_f32_16x16x32_bf16 v[{a}:{a+3}], v[{fa+4*mt}:{fa+4*mt+3}], v[{fb}:{fb+3}], {c}")
                if mt in (1, 3) and chunks: k(chunks.pop(0))
            if chunks: k(chunks.pop(0))
        while chunks: k(chunks.pop(0))
    k(f"""v_lshlrev_b32 v81, 16, v81
          v_sub_f32 v83, 1.0, v80
          v_cvt_pk_bf16_f32 v83, v83, v83
          v_and_b32 v83, 0xffff0000, v83
          s_nop 7""")
    for mt in range(5):
        for h2 in range(2):
            a = AA + 4*mt + 2*h2; b = AB + 4*mt + 2*h2
            k(f"""v_cvt_pk_bf16_f32 v56, v{a}, v{a+1}
                  v_cvt_pk_bf16_f32 v57, v{b}, v{b+1}
                  v_lshlrev_b32 v58, 16, v56
                  v_and_b32 v56, 0xffff0000, v56
                  v_lshlrev_b32 v59, 16, v57
                  v_and_b32 v57, 0xffff0000, v57
                  v_add_f32 v59, v59, v81
                  v_add_f32 v57, v57, v81
                  v_cvt_pk_bf16_f32 v57, v59, v57
                  v_lshlrev_b32 v59, 16, v57
                  v_and_b32 v57, 0xffff0000, v57
                  v_mul_f32 v58, v58, v80
                  v_mul_f32 v56, v56, v80
                  v_mul_f32 v59, v59, v83
                  v_mul_f32 v57, v57, v83
                  v_cvt_pk_bf16_f32 v56, v58, v56
                  v_cvt_pk_bf16_f32 v57, v59, v57
                  v_lshlrev_b32 v58, 16, v56
                  v_and_b32 v56, 0xffff0000, v56
                  v_lshlrev_b32 v59, 16, v57
                  v_and_b32 v57, 0xffff0000, v57
                  v_add_f32 v58, v58, v59
                  v_add_f32 v56, v56, v57
                  v_cvt_pk_bf16_f32 v{84+2*mt+h2}, v58, v56""")
    for mt in range(5):
        k(f"buffer_store_dwordx2 v[{84+2*mt}:{85+2*mt}], v82, s[52:55], 0 offen offset:{32*mt}")
    k.label("K3_END")
    k("s_endpgm")
    return k.text(), dict(vgpr=132, sgpr=72, lds=NS*STG, grid=256, block=256)
```

```python
Q = 0
KA = Q + 2048*640*2
KB = KA + 2048*32
VT = KB + 2048*8
H = VT + 24*2048*2
G = H + 2048*640*2
U = G + 2048*4
O = U + 640*1536*2
PART = O + 2048*640*2
BB = PART + 256*8*13*64*4
END = BB + 2048*640*2
```

```python
import sys
import layout as L
NAME = "gated_mix__grouped_kv_mqa__mixer_token_mlp__prompt"

class K:
    def __init__(self):
        self.L = []
        self.uid = 0
    def __call__(self, s):
        for line in s.strip("\n").split("\n"):
            self.L.append("    " + line.strip())
    def label(self, n):
        self.L.append(n + ":")
    def new(self, p):
        self.uid += 1
        return f"{p}_{self.uid}"
    def text(self):
        return "\n".join(self.L) + "\n"

def srd(k, d, lo, hi, size):
    k(f"""s_mov_b32 s{d}, s{lo}
          s_and_b32 s{d+1}, s{hi}, 0xffff
          s_mov_b32 s{d+2}, {size}
          s_mov_b32 s{d+3}, 0x00020000""")

def srd_off(k, d, lo, hi, off, size):
    k(f"""s_add_u32 s{d}, s{lo}, {off}
          s_addc_u32 s{d+1}, s{hi}, 0
          s_and_b32 s{d+1}, s{d+1}, 0xffff
          s_mov_b32 s{d+2}, {size}
          s_mov_b32 s{d+3}, 0x00020000""")

KOFF = dict(x=0, wq=8, wk=16, wv=24, wo=32, bx=40, w1=48, b1=56, w2=64, b2=72, gw=80, out=88, dbg=96, ws=104)

class Opnd:
    def __init__(self, typ, srd, pitch, voff, sbase, rd):
        self.typ = typ
        self.srd = srd
        self.pitch = pitch
        self.voff = voff
        self.sbase = sbase
        self.rd = rd

def dma_tile(k, op, KS, k0, ldsoff, s_wlds, s_tmp):
    ipw = (64 * KS * 2 // 1024) // 4
    for ii in range(ipw):
        if op.typ == 'tr':
            g = (k0 + 8 * ii) * op.pitch
            v = op.voff[0]
        else:
            rows_per = 1024 // (KS * 2)
            g = rows_per * ii * op.pitch + k0 * 2
            v = op.voff[ii % len(op.voff)]
        k(f"s_add_u32 m0, s{s_wlds}, {ldsoff + ii * 1024}")
        k(f"s_add_u32 s{s_tmp}, s{op.sbase}, {g}")
        k(f"buffer_load_dwordx4 v{v}, s[{op.srd}:{op.srd+3}], s{s_tmp} offen lds")

def frag_read(k, op, KS, kk, ldsoff, dst, vtmp):
    if op.typ == 'tr':
        k(f"ds_read_b64_tr_b16 v[{dst}:{dst+1}], v{op.rd} offset:{ldsoff + (16*kk)*128}")
        k(f"ds_read_b64_tr_b16 v[{dst+2}:{dst+3}], v{op.rd} offset:{ldsoff + (16*kk+4)*128}")
        return 2
    else:
        if kk == 0:
            k(f"ds_read_b128 v[{dst}:{dst+3}], v{op.rd} offset:{ldsoff}")
        else:
            k(f"v_xor_b32 v{vtmp}, {kk*32}, v{op.rd}")
            k(f"ds_read_b128 v[{dst}:{dst+3}], v{vtmp} offset:{ldsoff}")
        return 1

def gemm_ring(k, steps, KS, NS, lds0, s_wlds, s_tmp, fragM, fragN, vtmp, extra_vm=0, pre_issued=False, barrier_hook=None):
    TS = 64 * KS * 2
    ipw = (TS // 1024) // 4
    D = 2 * ipw
    n = len(steps)
    def issue(t):
        opM, opN, k0M, k0N, acc, first = steps[t]
        b = lds0 + (t % NS) * 2 * TS
        dma_tile(k, opM, KS, k0M, b, s_wlds, s_tmp)
        dma_tile(k, opN, KS, k0N, b + TS, s_wlds, s_tmp)
    if not pre_issued:
        for t in range(min(NS - 1, n)):
            issue(t)
    nk = KS // 16
    for t in range(n):
        opM, opN, k0M, k0N, acc, first = steps[t]
        inflight_after = min(n - 1, t + NS - 2) - t
        k(f"s_waitcnt vmcnt({inflight_after * D})")
        k("s_barrier")
        if t + NS - 1 < n:
            issue(t + NS - 1)
        b = lds0 + (t % NS) * 2 * TS
        cnt = []
        def rd(kk):
            c = frag_read(k, opM, KS, kk, b, fragM + 4 * (kk % 3), vtmp)
            c += frag_read(k, opN, KS, kk, b + TS, fragN + 4 * (kk % 3), vtmp + 1)
            cnt.append(c)
        rd(0); rd(1)
        for kk in range(nk):
            if kk + 2 < nk:
                rd(kk + 2)
            pend = sum(cnt[kk + 1:])
            k(f"s_waitcnt lgkmcnt({pend})")
            a = fragM + 4 * (kk % 3); bb = fragN + 4 * (kk % 3)
            c = "0" if (first and kk == 0) else f"v[{acc}:{acc+15}]"
            k(f"v_mfma_f32_32x32x16_bf16 v[{acc}:{acc+15}], v[{a}:{a+3}], v[{bb}:{bb+3}], {c}")

def lane_setup_gemm(k, KS, vl, vt, tr_voff, dir_voff, tr_rd, dir_rd, wm_s=None):
    pass

def tr_voff(k, dst, vl, pitch_s, t0, t1):
    k(f"""v_lshrrev_b32 v{t0}, 3, v{vl}
          v_mul_lo_u32 v{t0}, v{t0}, s{pitch_s}
          v_lshrrev_b32 v{t1}, 4, v{vl}
          v_and_b32 v{t1}, 1, v{t1}
          v_lshlrev_b32 v{t1}, 2, v{t1}
          v_and_b32 v{dst}, 7, v{vl}
          v_xor_b32 v{dst}, v{dst}, v{t1}
          v_lshlrev_b32 v{dst}, 4, v{dst}
          v_add_u32 v{dst}, v{dst}, v{t0}""")

def dir_voff64(k, dsts, vl, pitch_s, t0, t1):
    for par, dst in enumerate(dsts):
        k(f"""v_lshrrev_b32 v{t0}, 3, v{vl}
              v_mul_lo_u32 v{t0}, v{t0}, s{pitch_s}
              v_lshrrev_b32 v{t1}, 4, v{vl}
              v_add_u32 v{t1}, {4*par}, v{t1}
              v_and_b32 v{dst}, 7, v{vl}
              v_xor_b32 v{dst}, v{dst}, v{t1}
              v_lshlrev_b32 v{dst}, 4, v{dst}
              v_add_u32 v{dst}, v{dst}, v{t0}""")

def dir_voff128(k, dsts, vl, pitch_s, t0, t1):
    for par, dst in enumerate(dsts):
        k(f"""v_lshrrev_b32 v{t0}, 4, v{vl}
              v_add_u32 v{t1}, {4*par}, v{t0}
              v_mul_lo_u32 v{t0}, v{t0}, s{pitch_s}
              v_and_b32 v{dst}, 15, v{vl}
              v_xor_b32 v{dst}, v{dst}, v{t1}
              v_lshlrev_b32 v{dst}, 4, v{dst}
              v_add_u32 v{dst}, v{dst}, v{t0}""")

def tr_rd(k, dst, vl, half_s, t0, t1):
    k(f"""v_and_b32 v{t0}, 3, v{vl}
          v_lshlrev_b32 v{t0}, 3, v{t0}
          v_lshrrev_b32 v{t1}, 4, v{vl}
          v_and_b32 v{t1}, 1, v{t1}
          v_lshlrev_b32 v{t1}, 5, v{t1}
          v_add_u32 v{t0}, v{t0}, v{t1}
          s_lshl_b32 s{half_s}, s{half_s}, 6
          v_add_u32 v{t0}, s{half_s}, v{t0}
          v_lshrrev_b32 v{t1}, 3, v{vl}
          v_and_b32 v{t1}, 1, v{t1}
          v_lshlrev_b32 v{t1}, 6, v{t1}
          v_xor_b32 v{t0}, v{t0}, v{t1}
          v_lshrrev_b32 v{t1}, 2, v{vl}
          v_and_b32 v{t1}, 3, v{t1}
          v_lshlrev_b32 v{t1}, 7, v{t1}
          v_add_u32 v{t0}, v{t0}, v{t1}
          v_lshrrev_b32 v{t1}, 5, v{vl}
          v_lshlrev_b32 v{t1}, 10, v{t1}
          v_add_u32 v{dst}, v{t0}, v{t1}""")

def dir_rd(k, dst, vl, half_s, KS, t0, t1):
    rb = KS * 2
    sh = {128: 7, 256: 8}[rb]
    k(f"""v_and_b32 v{t0}, 31, v{vl}
          s_lshl_b32 s{half_s}, s{half_s}, 5
          v_add_u32 v{t0}, s{half_s}, v{t0}""")
    if KS == 64:
        k(f"""v_lshrrev_b32 v{t1}, 1, v{t0}
              v_and_b32 v{t1}, 7, v{t1}""")
    else:
        k(f"v_and_b32 v{t1}, 15, v{t0}")
    k(f"""v_lshrrev_b32 v{dst}, 5, v{vl}
          v_xor_b32 v{dst}, v{dst}, v{t1}
          v_lshlrev_b32 v{dst}, 4, v{dst}
          v_lshlrev_b32 v{t0}, {sh}, v{t0}
          v_add_u32 v{dst}, v{dst}, v{t0}""")

def prologue(k, nwg):
    k(f"""s_cmp_ge_u32 s2, {nwg}
          s_cbranch_scc1 {k.endl}
          v_lshrrev_b32 v1, 6, v0
          v_and_b32 v2, 63, v0
          s_nop 0
          v_readfirstlane_b32 s3, v1""")

def gen_k1():
    k = K(); k.endl = "K1_END"
    prologue(k, 512)
    k(f"""s_load_dwordx2 s[4:5], s[0:1], {KOFF['x']}
          s_load_dwordx2 s[6:7], s[0:1], {KOFF['wq']}
          s_load_dwordx2 s[20:21], s[0:1], {KOFF['ws']}
          s_load_dwordx2 s[22:23], s[0:1], {KOFF['wk']}
          s_load_dwordx2 s[24:25], s[0:1], {KOFF['wv']}
          s_load_dwordx2 s[26:27], s[0:1], {KOFF['gw']}
          s_waitcnt lgkmcnt(0)""")
    srd(k, 8, 4, 5, 2048*640*2)
    k("""s_cmp_ge_u32 s2, 320
         s_cbranch_scc1 K1_ROWS""")
    srd(k, 12, 6, 7, 640*640*2)
    srd_off(k, 16, 20, 21, L.Q, 2048*640*2)
    KS, NS = 64, 4
    k("""s_and_b32 s60, s2, 7
         s_lshr_b32 s61, s2, 3
         s_mul_hi_u32 s28, s61, 0x33333334
         s_mul_i32 s29, s28, 5
         s_sub_u32 s29, s61, s29
         s_and_b32 s34, s60, 3
         s_lshl_b32 s34, s34, 3
         s_add_u32 s28, s28, s34
         s_lshr_b32 s34, s60, 2
         s_mul_i32 s34, s34, 5
         s_add_u32 s29, s29, s34
         s_mov_b32 s30, 1280""")
    ipw = 2
    k(f"""s_mul_i32 s31, s3, {ipw*8*1280}
          s_lshl_b32 s34, s29, 7
          s_add_u32 s31, s31, s34
          s_lshl_b32 s32, s28, 6
          s_mul_i32 s34, s3, {ipw*8}
          s_add_u32 s32, s32, s34
          s_mul_i32 s32, s32, 1280
          s_lshl_b32 s33, s3, {10+1}
          s_and_b32 s35, s3, 1
          s_lshr_b32 s36, s3, 1""")
    k("s_mov_b32 s37, s35\n s_mov_b32 s38, s36")
    tr_voff(k, 3, 2, 30, 10, 11)
    dir_voff64(k, [4, 5], 2, 30, 10, 11)
    tr_rd(k, 6, 2, 37, 10, 11)
    dir_rd(k, 7, 2, 38, KS, 10, 11)
    opM = Opnd('tr', 12, 1280, [3], 31, 6)
    opN = Opnd('dir', 8, 1280, [4, 5], 32, 7)
    ACC = 16
    steps = [(opM, opN, t*KS, t*KS, ACC, t == 0) for t in range(640 // KS)]
    gemm_ring(k, steps, KS, NS, 0, 33, 34, 32, 44, 12)
    k(f"""v_and_b32 v10, 31, v2
          s_lshl_b32 s34, s28, 6
          s_lshl_b32 s39, s36, 5
          s_add_u32 s34, s34, s39
          v_add_u32 v10, s34, v10
          v_mul_lo_u32 v10, v10, s30
          v_lshrrev_b32 v11, 5, v2
          v_lshlrev_b32 v11, 3, v11
          v_add_u32 v10, v10, v11
          s_lshl_b32 s34, s29, 7
          s_lshl_b32 s39, s35, 6
          s_add_u32 s34, s34, s39
          v_add_u32 v10, s34, v10
          s_nop 7
          s_nop 3""")
    k("s_mov_b32 s34, 0x3ea52b5c")
    for j in range(16):
        k(f"v_mul_f32 v{ACC+j}, s34, v{ACC+j}")
    for j in range(4):
        a = ACC + 4*j
        k(f"""v_cvt_pk_bf16_f32 v{56+2*j}, v{a}, v{a+1}
              v_cvt_pk_bf16_f32 v{57+2*j}, v{a+2}, v{a+3}""")
    for j in range(4):
        k(f"buffer_store_dwordx2 v[{56+2*j}:{57+2*j}], v10, s[16:19], 0 offen offset:{16*j}")
    k("s_endpgm")
    k.label("K1_ROWS")
    k("s_mov_b32 s30, 1280\n s_cmp_ge_u32 s2, 448\n s_cbranch_scc1 K1_KV")
    k("s_sub_u32 s28, s2, 320")
    srd(k, 40, 26, 27, 640*2)
    srd_off(k, 44, 20, 21, L.H, 2048*640*2)
    srd_off(k, 48, 20, 21, L.G, 2048*4)
    k(f"""v_lshrrev_b32 v4, 4, v0
          v_and_b32 v5, 15, v0
          s_lshl_b32 s34, s28, 4
          v_add_u32 v6, s34, v4
          v_mul_lo_u32 v7, v6, s30
          v_lshlrev_b32 v8, 4, v5
          v_add_u32 v7, v7, v8""")
    NP = 20
    X0 = 24; GW0 = 44; XF = 64
    for i in range(5):
        k(f"buffer_load_dwordx4 v[{X0+4*i}:{X0+4*i+3}], v7, s[8:11], 0 offen offset:{256*i}")
    for i in range(5):
        k(f"buffer_load_dwordx4 v[{GW0+4*i}:{GW0+4*i+3}], v8, s[40:43], 0 offen offset:{256*i}")
    k("s_waitcnt vmcnt(5)\n v_mov_b32 v10, 0\n v_mov_b32 v11, 0")
    for i in range(NP):
        k(f"""v_lshlrev_b32 v{XF+2*i}, 16, v{X0+i}
              v_and_b32 v{XF+2*i+1}, 0xffff0000, v{X0+i}
              v_add_f32 v10, v10, v{XF+2*i}
              v_add_f32 v10, v10, v{XF+2*i+1}""")
    def red16(r, t):
        for m in (0x041F, 0x081F, 0x101F, 0x201F):
            k(f"""ds_swizzle_b32 v{t}, v{r} offset:{m}
                  s_waitcnt lgkmcnt(0)
                  v_add_f32 v{r}, v{r}, v{t}""")
    red16(10, 12)
    k(f"""s_mov_b32 s34, 0x3acccccd
          v_mul_f32 v10, s34, v10
          v_mov_b32 v16, 0""")
    for i in range(2*NP):
        k(f"""v_sub_f32 v12, v{XF+i}, v10
              v_fmac_f32 v16, v12, v12""")
    red16(16, 12)
    k("s_waitcnt vmcnt(0)")
    for i in range(NP):
        gr = GW0 + i
        k(f"""v_lshlrev_b32 v14, 16, v{gr}
              v_and_b32 v15, 0xffff0000, v{gr}
              v_mul_f32 v14, v{XF+2*i}, v14
              v_mul_f32 v15, v{XF+2*i+1}, v15
              v_cvt_pk_bf16_f32 v14, v14, v15
              v_lshlrev_b32 v15, 16, v14
              v_and_b32 v14, 0xffff0000, v14
              v_add_f32 v11, v11, v15
              v_add_f32 v11, v11, v14""")
    red16(11, 12)
    k(f"""v_mul_f32 v16, s34, v16
          v_cvt_pk_bf16_f32 v17, v10, v16
          v_lshlrev_b32 v18, 16, v17
          v_and_b32 v19, 0xffff0000, v17
          v_add_f32 v19, 0x3727c5ac, v19
          v_cvt_pk_bf16_f32 v19, v19, v19
          v_and_b32 v19, 0xffff0000, v19
          v_sqrt_f32 v19, v19
          s_nop 0
          v_cvt_pk_bf16_f32 v19, v19, v19
          v_and_b32 v19, 0xffff0000, v19
          v_rcp_f32 v20, v19
          s_nop 0""")
    for i in range(NP):
        k(f"""v_sub_f32 v12, v{XF+2*i}, v18
              v_sub_f32 v13, v{XF+2*i+1}, v18
              v_cvt_pk_bf16_f32 v12, v12, v13
              v_and_b32 v13, 0xffff0000, v12
              v_lshlrev_b32 v12, 16, v12
              v_mul_f32 v14, v12, v20
              v_mul_f32 v15, v13, v20
              v_fma_f32 v12, -v14, v19, v12
              v_fma_f32 v13, -v15, v19, v13
              v_fma_f32 v14, v12, v20, v14
              v_fma_f32 v15, v13, v20, v15
              v_cvt_pk_bf16_f32 v{X0+i}, v14, v15""")
    for i in range(5):
        k(f"buffer_store_dwordx4 v[{X0+4*i}:{X0+4*i+3}], v7, s[44:47], 0 offen offset:{256*i}")
    k(f"""v_cvt_pk_bf16_f32 v11, v11, v11
          v_and_b32 v11, 0xffff0000, v11
          v_mul_f32 v11, 0xbfb8aa3b, v11
          v_exp_f32 v11, v11
          s_nop 0
          v_add_f32 v11, 1.0, v11
          v_rcp_f32 v11, v11
          s_nop 0
          v_cvt_pk_bf16_f32 v11, v11, v11
          v_and_b32 v11, 0xffff0000, v11
          v_lshlrev_b32 v12, 2, v6
          v_cmp_eq_u32 vcc, 0, v5
          s_and_saveexec_b64 s[36:37], vcc
          buffer_store_dword v11, v12, s[48:51], 0 offen
          s_endpgm""")
    k.label("K1_KV")
    k("s_sub_u32 s28, s2, 448")
    srd(k, 12, 22, 23, 640*20*2)
    srd(k, 16, 24, 25, 640*20*2)
    srd_off(k, 52, 20, 21, L.KA, 2048*32)
    srd_off(k, 56, 20, 21, L.KB, 2048*8)
    srd_off(k, 60, 20, 21, L.VT, 21*4096)
    WVL = 26112
    k(f"""s_and_b32 s35, s3, 1
          s_lshr_b32 s36, s3, 1
          v_and_b32 v4, 15, v2
          v_lshrrev_b32 v5, 4, v2
          s_lshl_b32 s34, s28, 5
          s_lshl_b32 s37, s35, 4
          s_add_u32 s39, s34, s37
          v_add_u32 v6, s39, v4
          v_mul_lo_u32 v7, v6, s30
          v_lshlrev_b32 v8, 4, v5
          v_add_u32 v7, v7, v8
          v_lshlrev_b32 v3, 4, v2""")
    for i in range(7):
        lab = k.new("K1_SK")
        if i == 6:
            k(f"s_cmp_ge_u32 s3, 1\n s_cbranch_scc1 {lab}")
        k(f"""s_lshl_b32 s34, s3, 10
              s_add_u32 s34, s34, {i*4096}
              s_mov_b32 m0, s34
              s_nop 0
              buffer_load_dwordx4 v3, s[12:15], s34 offen lds
              s_add_u32 s37, s34, {WVL}
              s_mov_b32 m0, s37
              s_nop 0
              buffer_load_dwordx4 v3, s[16:19], s34 offen lds""")
        if i == 6:
            k.label(lab)
    XF = 64
    for ks in range(20):
        k(f"buffer_load_dwordx4 v[{XF+4*ks}:{XF+4*ks+3}], v7, s[8:11], 0 offen offset:{64*ks}")
    k(f"""v_lshrrev_b32 v9, 2, v4
          v_lshlrev_b32 v10, 3, v5
          v_add_u32 v9, v9, v10
          v_mul_u32_u24 v9, 40, v9
          v_and_b32 v10, 3, v4
          v_lshlrev_b32 v10, 3, v10
          v_add_u32 v9, v9, v10
          s_mul_i32 s37, s36, {WVL}
          v_add_u32 v9, s37, v9
          s_waitcnt vmcnt(0)
          s_barrier""")
    WF = 16
    lab_v = "K1_VPATH"; lab_done = "K1_KVDONE"
    def kvloop(isV):
        def rd(ks):
            f = WF + 8*(ks % 3)
            for ct in range(2):
                o = ks*32*40 + ct*32
                k(f"ds_read_b64_tr_b16 v[{f+4*ct}:{f+4*ct+1}], v9 offset:{o}")
                k(f"ds_read_b64_tr_b16 v[{f+4*ct+2}:{f+4*ct+3}], v9 offset:{o+160}")
        rd(0); rd(1)
        for ks in range(20):
            if ks + 2 < 20: rd(ks + 2)
            k(f"s_waitcnt lgkmcnt({4*min(2, 19-ks)})")
            f = WF + 8*(ks % 3)
            for ct in range(2):
                acc = 40 + 4*ct
                c = "0" if ks == 0 else f"v[{acc}:{acc+3}]"
                w = f"v[{f+4*ct}:{f+4*ct+3}]"; x = f"v[{XF+4*ks}:{XF+4*ks+3}]"
                a, b = (x, w) if isV else (w, x)
                k(f"v_mfma_f32_16x16x32_bf16 v[{acc}:{acc+3}], {a}, {b}, {c}")
        k("s_nop 7\n s_nop 1")
    k(f"s_cmp_eq_u32 s36, 1\n s_cbranch_scc1 {lab_v}")
    kvloop(False)
    k(f"""v_cvt_pk_bf16_f32 v48, v40, v41
          v_cvt_pk_bf16_f32 v49, v42, v43
          v_cvt_pk_bf16_f32 v50, v44, v45
          v_cvt_pk_bf16_f32 v51, v46, v47
          v_lshlrev_b32 v10, 5, v6
          v_lshlrev_b32 v11, 3, v5
          v_add_u32 v10, v10, v11
          v_lshlrev_b32 v11, 3, v6
          buffer_store_dwordx2 v[48:49], v10, s[52:55], 0 offen
          v_cmp_gt_u32 vcc, 16, v2
          s_and_saveexec_b64 s[38:39], vcc
          buffer_store_dwordx2 v[50:51], v11, s[56:59], 0 offen
          s_endpgm""")
    k.label(lab_v)
    kvloop(True)
    k(f"""v_cvt_pk_bf16_f32 v48, v40, v41
          v_cvt_pk_bf16_f32 v49, v42, v43
          v_cvt_pk_bf16_f32 v50, v44, v45
          v_cvt_pk_bf16_f32 v51, v46, v47
          v_and_b32 v10, 1, v5
          v_lshlrev_b32 v10, 3, v10
          v_lshrrev_b32 v11, 1, v5
          v_lshlrev_b32 v11, 2, v11
          v_add_u32 v10, v10, v11
          v_add_u32 v10, s39, v10
          v_lshlrev_b32 v10, 1, v10
          v_lshlrev_b32 v11, 12, v4
          v_add_u32 v10, v10, v11
          buffer_store_dwordx2 v[48:49], v10, s[60:63], 0 offen
          v_mov_b32 v12, 0x3f803f80
          v_cmp_eq_u32 vcc, 4, v4
          s_nop 1
          v_cndmask_b32 v50, v50, v12, vcc
          v_cndmask_b32 v51, v51, v12, vcc
          v_add_u32 v10, 0x10000, v10
          v_cmp_gt_u32 vcc, 5, v4
          s_and_saveexec_b64 s[38:39], vcc
          buffer_store_dwordx2 v[50:51], v10, s[60:63], 0 offen""")
    k.label(lab_done)
    k.label("K1_END")
    k("s_endpgm")
    return k.text(), dict(vgpr=144, sgpr=72, lds=65536, grid=512, block=256)

def kernel_wrap(label, body, meta):
    v = meta['vgpr']
    s = f""".globl {label}
.p2align 8
.type {label},@function
{label}:
{body}"""
    kd = f""".p2align 6
.amdhsa_kernel {label}
  .amdhsa_next_free_vgpr {v}
  .amdhsa_next_free_sgpr {meta['sgpr']}
  .amdhsa_accum_offset {(v+3)//4*4}
  .amdhsa_group_segment_fixed_size 0
  .amdhsa_kernarg_size 112
  .amdhsa_user_sgpr_count 2
  .amdhsa_user_sgpr_kernarg_segment_ptr 1
  .amdhsa_system_sgpr_workgroup_id_x 1
.end_amdhsa_kernel
"""
    return s, kd

def main():
    ks = []
    ks.append(("k1_kernel",) + gen_k1())
    import gen2
    if hasattr(gen2, "gen_k2"):
        ks.append(("k2_kernel",) + gen2.gen_k2(0))
    import gen3
    ks.append(("k3_kernel",) + gen3.gen_k3())
    head = open(f"cdna_kernels/{NAME}.s.ref").read().split("; Override launch")[0]
    out = head
    for label, body, meta in ks:
        out += f"; @launch kernel={label} grid=({meta['grid']},1,1) block=({meta['block']},1,1) lds={meta['lds']}\n"
    out += '.amdgcn_target "amdgcn-amd-amdhsa--gfx950"\n.text\n'
    kds = ""
    for label, body, meta in ks:
        s, kd = kernel_wrap(label, body, meta)
        out += s; kds += kd
    out += '.section .rodata,"a"\n' + kds
    open(f"cdna_kernels/{NAME}.s", "w").write(out)

if __name__ == "__main__":
    main()
```

```python
from gen import *
import layout as L

KVB = 13312
NKV = 4
G0 = NKV * KVB
import os
STAMP = os.environ.get('STAMP')

class VM:
    def __init__(self): self.ops = []
    def add(self, tag, n=1): self.ops += [tag] * n
    def wait_for(self, tags):
        last = -1
        for i, t in enumerate(self.ops):
            if t in tags: last = i
        return len(self.ops) - 1 - last

def gen_k2(half=0):
    T = 'K2'
    NPH = 16
    TPP = 4
    k = K(); k.endl = f"{T}_END"
    prologue(k, 256)
    k(f"""s_load_dwordx2 s[20:21], s[0:1], {KOFF['ws']}
          s_load_dwordx2 s[4:5], s[0:1], {KOFF['w2' if half else 'w1']}
          s_load_dwordx2 s[6:7], s[0:1], {KOFF['b2' if half else 'b1']}
          s_load_dwordx2 s[66:67], s[0:1], {KOFF['w2']}
          s_load_dwordx2 s[68:69], s[0:1], {KOFF['wo']}
          s_waitcnt lgkmcnt(0)
          s_cmp_ge_u32 s3, 8
          s_cbranch_scc1 {T}_LOADER""")
    srd_off(k, 8, 20, 21, L.Q, 2048*640*2)
    srd_off(k, 12, 20, 21, L.O, 2048*640*2)
    srd_off(k, 16, 20, 21, L.PART, 256*8*13*256)
    if STAMP:
        k("s_memtime s[40:41]\n s_memrealtime s[48:49]")
    k("""s_lshr_b32 s22, s2, 3
         s_and_b32 s23, s2, 7
         s_lshl_b32 s23, s23, 8
         s_lshl_b32 s24, s3, 5
         s_add_u32 s23, s23, s24
         v_and_b32 v3, 31, v2
         v_lshrrev_b32 v4, 5, v2
         v_add_u32 v5, s23, v3
         s_mov_b32 s25, 1280
         v_mul_lo_u32 v5, v5, s25
         s_mul_i32 s24, s22, 40
         v_add_u32 v5, s24, v5
         s_lshl_b32 s24, s2, 3
         s_add_u32 s24, s24, s3
         s_mul_i32 s24, s24, 3328
         v_lshlrev_b32 v7, 2, v2""")
    Q1, Q2 = 8, 12
    KS_ = [14, 20]
    VF = 26
    S0, S1 = 42, 58
    O = 74
    CM = 90
    P = 106
    VT, VT2, VMX, VM_ = 114, 115, 116, 117
    ACUR, BCUR, ANXT, BNXT, LA, LB = 118, 119, 120, 121, 122, 123
    k(f"""v_lshlrev_b32 v6, 4, v4
          v_add_u32 v6, v5, v6
          buffer_load_dwordx2 v[{Q1}:{Q1+1}], v6, s[8:11], 0 offen
          buffer_load_dwordx2 v[{Q1+2}:{Q1+3}], v6, s[8:11], 0 offen offset:8
          buffer_load_dwordx2 v[{Q2}:{Q2+1}], v5, s[8:11], 0 offen offset:32""")
    if half:
        for i in range(12):
            k(f"buffer_load_dword v{O+i}, v7, s[16:19], s24 offen offset:{256*i}")
        k(f"buffer_load_dword v{CM}, v7, s[16:19], s24 offen offset:{256*12}")
    k(f"""v_lshlrev_b32 v{LA}, 9, v4
          v_lshlrev_b32 v6, 4, v3
          v_add_u32 v{LA}, v{LA}, v6
          v_lshlrev_b32 v{LB}, 3, v3
          v_mov_b32 v{ACUR}, v{LA}
          v_mov_b32 v{BCUR}, v{LB}
          v_add_u32 v{ANXT}, {KVB}, v{LA}
          v_add_u32 v{BNXT}, {KVB}, v{LB}
          s_mov_b32 s26, {KVB}
          s_mov_b32 s29, 0""")
    for i in range(16):
        if half and i < 12: continue
        k(f"v_mov_b32 v{O+i}, 0")
    for i in range(4):
        k(f"v_mov_b32 v{P+4+i}, 0")
        k(f"v_mov_b32 v{VF+12+i}, 0")
    k(f"""s_waitcnt vmcnt(0)
          v_cmp_gt_u32 vcc, 32, v2
          s_nop 1
          v_cndmask_b32 v{Q2}, 0, v{Q2}, vcc
          v_cndmask_b32 v{Q2+1}, 0, v{Q2+1}, vcc""")
    if half:
        for i in range(1, 16):
            k(f"v_mov_b32 v{CM+i}, v{CM}")
    k("s_barrier")
    def rdK(a, b, t, ks):
        r = KS_[ks]
        k(f"ds_read_b128 v[{r}:{r+3}], v{a} offset:{t*1024}")
        k(f"ds_read_b64 v[{r+4}:{r+5}], v{b} offset:{4096 + t*256}")
    def rdV(a, t, vs):
        for j in range(2):
            r = VF + 8*vs + 4*j
            k(f"ds_read_b128 v[{r}:{r+3}], v{a} offset:{5120 + (2*t+j)*1024}")
    def qk(i, S, ks, c=None):
        r = KS_[ks]
        c = c or f"v[{S}:{S+15}]"
        if i == 0: return f"v_mfma_f32_32x32x16_bf16 v[{S}:{S+15}], v[{r}:{r+3}], v[{Q1}:{Q1+3}], {c}"
        return f"v_mfma_f32_32x32x8_bf16 v[{S}:{S+15}], v[{r+4}:{r+5}], v[{Q2}:{Q2+1}], {c}"
    def maxtree(S, extra=None):
        s = lambda i: f"v{S+i}"
        k(f"""v_max3_f32 v{VMX}, {s(0)}, {s(1)}, {s(2)}
              v_max3_f32 v{VT}, {s(3)}, {s(4)}, {s(5)}
              v_max3_f32 v{VMX}, v{VMX}, {s(6)}, {s(7)}
              v_max3_f32 v{VT}, v{VT}, {s(8)}, {s(9)}
              v_max3_f32 v{VMX}, v{VMX}, {s(10)}, {s(11)}
              v_max3_f32 v{VT}, v{VT}, {s(12)}, {s(13)}
              v_max3_f32 v{VMX}, v{VMX}, {s(14)}, {s(15)}""")
        if extra: k(f"v_max3_f32 v{VMX}, v{VMX}, v{VT}, v{extra}")
        else: k(f"v_max_f32 v{VMX}, v{VMX}, v{VT}")
        k(f"""v_mov_b32 v{VT}, v{VMX}
              s_nop 1
              v_permlane32_swap_b32 v{VMX}, v{VT}
              v_max_f32 v{VMX}, v{VMX}, v{VT}""")
    if STAMP:
        k("s_memtime s[42:43]")
    rdK(ACUR, BCUR, 0, 0)
    rdK(ACUR, BCUR, 1, 1)
    rdV(ACUR, 0, 0)
    k("s_waitcnt lgkmcnt(4)")
    if not half:
        k(qk(0, S0, 0, "0")); k(qk(1, S0, 0))
        k("s_nop 7\n s_nop 4")
        maxtree(S0)
        for i in range(16):
            k(f"v_sub_f32 v{CM+i}, 0, v{VMX}")
        k("s_nop 1")
    k(qk(0, S0, 0, f"v[{CM}:{CM+15}]")); k(qk(1, S0, 0))
    k("s_nop 7\n s_nop 4")
    k.label(f"{T}_ALOOP")
    for t in range(TPP):
        Sc, Sn = (S0, S1) if t % 2 == 0 else (S1, S0)
        e = lambda i: k(f"v_exp_f32 v{Sc+i}, v{Sc+i}")
        c = lambda i: k(f"v_cvt_pk_bf16_f32 v{P+i}, v{Sc+2*i}, v{Sc+2*i+1}")
        vprev = VF + 8*((t+1) % 2); vcur = VF + 8*(t % 2)
        k("s_waitcnt lgkmcnt(2)")
        k(qk(0, Sn, (t+1) % 2, f"v[{CM}:{CM+15}]"))
        if t + 2 < TPP: rdK(ACUR, BCUR, t + 2, t % 2)
        else: rdK(ANXT, BNXT, t + 2 - TPP, t % 2)
        for i in range(0, 5): e(i)
        k(f"v_mfma_f32_32x32x16_bf16 v[{O}:{O+15}], v[{vprev+4}:{vprev+7}], v[{P+4}:{P+7}], v[{O}:{O+15}]")
        if t + 1 < TPP: rdV(ACUR, t + 1, (t + 1) % 2)
        else: rdV(ANXT, 0, 0)
        for i in range(5, 8): e(i)
        k("s_nop 0")
        for i in range(0, 4): c(i)
        k(qk(1, Sn, (t+1) % 2))
        for i in range(8, 13): e(i)
        k("s_waitcnt lgkmcnt(4)")
        k(f"v_mfma_f32_32x32x16_bf16 v[{O}:{O+15}], v[{vcur}:{vcur+3}], v[{P}:{P+3}], v[{O}:{O+15}]")
        for i in range(13, 16): e(i)
        k("s_nop 0")
        for i in range(4, 8): c(i)
    k(f"""v_mov_b32 v{ACUR}, v{ANXT}
          v_mov_b32 v{BCUR}, v{BNXT}
          s_add_u32 s26, s26, {KVB}
          s_cmp_ge_u32 s26, {NKV*KVB}
          s_cselect_b32 s26, 0, s26
          v_add_u32 v{ANXT}, s26, v{LA}
          v_add_u32 v{BNXT}, s26, v{LB}
          s_add_u32 s29, s29, 1
          s_cmp_lt_u32 s29, {NPH}
          s_cbranch_scc0 {T}_AEND
          s_barrier
          s_branch {T}_ALOOP""")
    k.label(f"{T}_AEND")
    if STAMP:
        srd_off(k, 52, 20, 21, L.END + half*(1<<20), 1<<20)
        k(f"""s_memtime s[44:45]
              s_memrealtime s[50:51]
              s_waitcnt lgkmcnt(0)
              s_sub_u32 s42, s42, s40
              s_sub_u32 s44, s44, s40
              s_sub_u32 s50, s50, s48
              v_mov_b32 v{VT}, s42
              v_mov_b32 v{VT2}, s44
              v_mov_b32 v{VMX}, s50
              s_lshl_b32 s46, s2, 3
              s_add_u32 s46, s46, s3
              s_lshl_b32 s46, s46, 4
              v_mov_b32 v{VM_}, 0
              buffer_store_dword v{VT}, v{VM_}, s[52:55], s46 offen
              buffer_store_dword v{VT2}, v{VM_}, s[52:55], s46 offen offset:4
              buffer_store_dword v{VMX}, v{VM_}, s[52:55], s46 offen offset:8""")
    k(f"""v_mfma_f32_32x32x16_bf16 v[{O}:{O+15}], v[{VF+12}:{VF+15}], v[{P+4}:{P+7}], v[{O}:{O+15}]
          s_waitcnt lgkmcnt(0)
          s_nop 7
          s_nop 7""")
    if True:
        k.label(f"{T}_NORM")
        k(f"""v_mov_b32 v{VT}, v{O+8}
              v_mov_b32 v{VT2}, v{O+8}
              v_mov_b32 v{VM_}, 0x7149f2ca
              s_nop 1
              v_permlane32_swap_b32 v{VT}, v{VT2}
              s_cmp_eq_u32 s29, 99
              s_cbranch_scc1 {T}_NOCHK
              v_cmp_nlt_f32 vcc, v{VT2}, v{VM_}
              s_cbranch_vccnz {T}_FB""")
        k.label(f"{T}_NOCHK")
        k(f"v_rcp_f32 v{VT2}, v{VT2}\n s_nop 0")
        for i in range(12):
            k(f"v_mul_f32 v{O+i}, v{O+i}, v{VT2}")
        for i in range(6):
            k(f"v_cvt_pk_bf16_f32 v{P+i}, v{O+2*i}, v{O+2*i+1}")
        k(f"""v_lshlrev_b32 v6, 3, v4
              v_add_u32 v6, v5, v6
              buffer_store_dwordx2 v[{P}:{P+1}], v6, s[12:15], 0 offen
              buffer_store_dwordx2 v[{P+2}:{P+3}], v6, s[12:15], 0 offen offset:16
              v_cmp_gt_u32 vcc, 32, v2
              s_and_saveexec_b64 s[30:31], vcc
              buffer_store_dwordx2 v[{P+4}:{P+5}], v5, s[12:15], 0 offen offset:32
              s_endpgm""")
        k.label(f"{T}_FB")
        srd_off(k, 32, 20, 21, L.KA, 2048*32)
        srd_off(k, 36, 20, 21, L.VT, 21*4096)
        srd_off(k, 40, 20, 21, L.KB, 2048*8)
        r = KS_[0]
        k(f"""v_lshlrev_b32 v{BCUR}, 5, v3
              v_lshlrev_b32 v6, 4, v4
              v_add_u32 v{BCUR}, v{BCUR}, v6
              v_lshlrev_b32 v{ACUR}, 3, v3
              v_lshlrev_b32 v{ANXT}, 12, v3
              v_add_u32 v{ANXT}, v{ANXT}, v6
              v_mov_b32 v{VM_}, 0xf149f2ca
              s_mov_b32 s29, 0""")
        for i in range(16): k(f"v_mov_b32 v{O+i}, 0")
        k.label(f"{T}_FBL")
        k(f"""s_lshl_b32 s30, s29, 10
              s_lshl_b32 s31, s29, 6
              s_lshl_b32 s28, s29, 8
              buffer_load_dwordx4 v[{r}:{r+3}], v{BCUR}, s[32:35], s30 offen
              buffer_load_dwordx2 v[{r+4}:{r+5}], v{ACUR}, s[40:43], s28 offen
              buffer_load_dwordx4 v[{VF}:{VF+3}], v{ANXT}, s[36:39], s31 offen
              buffer_load_dwordx4 v[{VF+4}:{VF+7}], v{ANXT}, s[36:39], s31 offen offset:32
              s_waitcnt vmcnt(0)""")
        k(qk(0, S0, 0, "0")); k(qk(1, S0, 0))
        k("s_nop 7\n s_nop 7")
        maxtree(S0, VM_)
        k(f"""v_sub_f32 v{VT}, v{VM_}, v{VMX}
              v_exp_f32 v{VT}, v{VT}
              v_mov_b32 v{VM_}, v{VMX}""")
        for i in range(12): k(f"v_mul_f32 v{O+i}, v{O+i}, v{VT}")
        for i in range(16):
            k(f"v_sub_f32 v{S0+i}, v{S0+i}, v{VM_}")
            k(f"v_exp_f32 v{S0+i}, v{S0+i}")
        k("s_nop 0")
        for i in range(8): k(f"v_cvt_pk_bf16_f32 v{P+i}, v{S0+2*i}, v{S0+2*i+1}")
        k(f"""s_nop 1
              v_mfma_f32_32x32x16_bf16 v[{O}:{O+15}], v[{VF}:{VF+3}], v[{P}:{P+3}], v[{O}:{O+15}]
              v_mfma_f32_32x32x16_bf16 v[{O}:{O+15}], v[{VF+4}:{VF+7}], v[{P+4}:{P+7}], v[{O}:{O+15}]
              s_nop 7
              s_nop 7
              s_add_u32 s29, s29, 1
              s_cmp_lt_u32 s29, 64
              s_cbranch_scc1 {T}_FBL
              s_mov_b32 s29, 99
              s_branch {T}_NORM""")
    k.label(f"{T}_LOADER")
    k("s_sub_u32 s3, s3, 8\n s_setprio 3")
    srd_off(k, 8, 20, 21, L.KA, 2048*32)
    srd_off(k, 12, 20, 21, L.KB, 2048*8)
    srd_off(k, 16, 20, 21, L.VT, 21*4096)
    KS = 128
    TS = 64 * KS * 2
    STG = 2 * TS
    NG = 3
    if not half:
        NT = 30; NSTEP = 16
        srd_off(k, 40, 20, 21, L.H, 2048*640*2)
        srd(k, 44, 4, 5, 2048*1536*2)
        srd(k, 48, 6, 7, 1536*2)
        srd_off(k, 52, 20, 21, L.U, 640*1536*2)
        k(f"""s_and_b32 s60, s2, 7
              s_lshr_b32 s61, s2, 3
              s_mul_hi_u32 s22, s61, 0x2aaaaaab
              s_mul_i32 s23, s22, 6
              s_sub_u32 s23, s61, s23
              s_lshr_b32 s34, s60, 2
              s_mul_i32 s34, s34, 5
              s_add_u32 s22, s22, s34
              s_and_b32 s34, s60, 3
              s_mul_i32 s34, s34, 6
              s_add_u32 s23, s23, s34
              s_mov_b32 s24, 3072
              s_mov_b32 s25, 1280
              s_mul_i32 s31, s3, {4*8*3072}
              s_lshl_b32 s34, s23, 7
              s_add_u32 s31, s31, s34
              s_mul_i32 s32, s3, {4*8*1280}
              s_lshl_b32 s34, s22, 7
              s_add_u32 s32, s32, s34
              s_lshl_b32 s33, s3, 12
              s_and_b32 s35, s3, 1
              s_lshr_b32 s36, s3, 1
              s_mov_b32 s37, s35
              s_mov_b32 s38, s36""")
        tr_voff(k, 3, 2, 24, 10, 11)
        tr_voff(k, 4, 2, 25, 10, 11)
        tr_rd(k, 6, 2, 37, 10, 11)
        tr_rd(k, 7, 2, 38, 10, 11)
        k(f"v_add_u32 v6, {G0}, v6\n v_add_u32 v7, {G0}, v7\n v_add_u32 v12, 0x10000, v6\n v_add_u32 v13, 0x10000, v7")
        opM = Opnd('tr', 44, 3072, [3], 31, 6)
        opN = Opnd('tr', 40, 1280, [4], 32, 7)
        opM2 = Opnd('tr', 44, 3072, [3], 31, 12)
        opN2 = Opnd('tr', 40, 1280, [4], 32, 13)
        ACC = 16; FM = 32; FN = 44
    else:
        NT = 20; NSTEP = 12
        srd_off(k, 40, 20, 21, L.U, 640*1536*2)
        srd(k, 44, 4, 5, 1536*2048*2)
        srd(k, 48, 6, 7, 2048*2)
        srd_off(k, 52, 20, 21, L.BB, 2048*640*2)
        k(f"""s_and_b32 s60, s2, 7
              s_lshr_b32 s61, s2, 3
              s_mul_hi_u32 s22, s61, 0x33333334
              s_mul_i32 s23, s22, 5
              s_sub_u32 s23, s61, s23
              s_and_b32 s34, s60, 3
              s_lshl_b32 s34, s34, 2
              s_add_u32 s22, s22, s34
              s_lshr_b32 s34, s60, 2
              s_mul_i32 s34, s34, 5
              s_add_u32 s23, s23, s34
              s_mov_b32 s24, 3072
              s_mov_b32 s25, 4096
              s_and_b32 s35, s3, 1
              s_lshr_b32 s36, s3, 1
              s_lshl_b32 s31, s23, 6
              s_lshl_b32 s34, s3, 4
              s_add_u32 s31, s31, s34
              s_mul_i32 s31, s31, 3072
              s_lshl_b32 s32, s3, 17
              s_lshl_b32 s34, s22, 8
              s_add_u32 s32, s32, s34
              s_add_u32 s56, s32, 128
              s_lshl_b32 s33, s3, 12
              s_mov_b32 s38, 0""")
        tr_voff(k, 4, 2, 25, 10, 11)
        tr_rd(k, 7, 2, 38, 10, 11)
        k(f"""s_lshl_b32 s34, s36, 14
              s_add_u32 s34, s34, {G0}
              v_add_u32 v7, s34, v7
              v_xor_b32 v14, 64, v7
              v_add_u32 v12, 0x10000, v7
              v_add_u32 v13, 0x10000, v14
              s_mov_b32 s37, s35""")
        dir_voff128(k, [60+16, 61+16, 62+16, 63+16], 2, 24, 10, 11)
        dir_rd(k, 6, 2, 37, KS, 10, 11)
        U0 = G0 + NG*STG
        k(f"v_add_u32 v6, {U0}, v6")
        opU = Opnd('dir', 40, 3072, [76, 77, 78, 79], 31, 6)
        opN0 = Opnd('tr', 44, 4096, [4], 32, 7)
        opN1 = Opnd('tr', 44, 4096, [4], 56, 7)
        opNa = Opnd('tr', 44, 4096, [4], 32, 7)
        opNb = Opnd('tr', 44, 4096, [4], 32, 14)
        opNa2 = Opnd('tr', 44, 4096, [4], 32, 12)
        opNb2 = Opnd('tr', 44, 4096, [4], 32, 13)
        ACC = 16; ACC2 = 32; FN = 48; FN2 = 60; FM = 80
    k("""v_and_b32 v10, 31, v2
         v_lshrrev_b32 v11, 5, v2
         v_lshlrev_b32 v11, 4, v11
         v_lshlrev_b32 v8, 5, v10
         v_add_u32 v8, v8, v11
         v_lshlrev_b32 v9, 4, v2
         v_lshlrev_b32 v5, 12, v10
         v_add_u32 v5, v5, v11
         s_lshl_b32 s58, s3, 10
         s_lshl_b32 s57, s3, 11
         s_lshl_b32 s59, s3, 6
         s_lshl_b32 s34, s3, 4
         s_mov_b32 s62, 0xffff
         s_mov_b32 s63, 0
         s_lshl_b64 s[62:63], s[62:63], s34""")
    def kv_dma(c):
        slot = (c % NKV) * KVB
        k(f"""s_add_u32 m0, s58, {slot}
              s_add_u32 s34, s58, {c*4096}
              buffer_load_dwordx4 v8, s[8:11], s34 offen lds
              s_add_u32 m0, s57, {slot + 5120}
              s_add_u32 s34, s59, {c*256}
              buffer_load_dwordx4 v5, s[16:19], s34 offen lds
              s_add_u32 m0, s57, {slot + 5120 + 1024}
              s_add_u32 s34, s59, {c*256 + 32}
              buffer_load_dwordx4 v5, s[16:19], s34 offen lds
              s_mov_b32 m0, {slot + 4096}
              s_mov_b32 s34, {c*1024}
              s_mov_b64 exec, s[62:63]
              buffer_load_dwordx4 v9, s[12:15], s34 offen lds
              s_mov_b64 exec, -1""")
    def g_dma(t):
        b = G0 + (t % NG) * STG
        if not half:
            dma_tile(k, opM, KS, t*KS, b, 33, 34)
            dma_tile(k, opN, KS, t*KS, b + TS, 33, 34)
            return 8
        dma_tile(k, opN0, KS, t*KS, b, 33, 34)
        dma_tile(k, opN1, KS, t*KS, b + TS, 33, 34)
        return 8
    def u_dma(t):
        dma_tile(k, opU, KS, t*KS, U0 + (t % 2)*TS, 33, 34)
        return 4
    nk = KS // 16
    def epilogue_u():
        k(f"""v_and_b32 v10, 31, v2
              s_lshl_b32 s34, s22, 6
              s_lshl_b32 s39, s36, 5
              s_add_u32 s34, s34, s39
              v_add_u32 v10, s34, v10
              v_mul_lo_u32 v10, v10, s24
              v_lshrrev_b32 v11, 5, v2
              v_lshlrev_b32 v11, 3, v11
              s_lshl_b32 s34, s23, 7
              s_lshl_b32 s39, s35, 6
              s_add_u32 s34, s34, s39
              v_add_u32 v11, s34, v11
              v_add_u32 v10, v10, v11""")
        for j in range(4):
            k(f"buffer_load_dwordx2 v[{56+2*j}:{57+2*j}], v11, s[48:51], 0 offen offset:{16*j}")
        k("s_mov_b32 s34, 0x3d372713\n s_mov_b32 s39, 0xc0135761\n s_waitcnt vmcnt(0)\n s_nop 7")
        for j in range(4):
            for h2 in range(2):
                a = ACC + 4*j + 2*h2; br = 56 + 2*j + h2
                k(f"""v_cvt_pk_bf16_f32 v64, v{a}, v{a+1}
                      v_lshlrev_b32 v65, 16, v64
                      v_and_b32 v64, 0xffff0000, v64
                      v_lshlrev_b32 v66, 16, v{br}
                      v_and_b32 v67, 0xffff0000, v{br}
                      v_add_f32 v65, v65, v66
                      v_add_f32 v64, v64, v67
                      v_cvt_pk_bf16_f32 v64, v65, v64
                      v_lshlrev_b32 v65, 16, v64
                      v_and_b32 v64, 0xffff0000, v64
                      v_mul_f32 v66, v65, v65
                      v_mul_f32 v67, v64, v64
                      v_fma_f32 v66, v66, s34, 1.0
                      v_fma_f32 v67, v67, s34, 1.0
                      v_mul_f32 v66, v66, v65
                      v_mul_f32 v67, v67, v64
                      v_mul_f32 v66, s39, v66
                      v_mul_f32 v67, s39, v67
                      v_exp_f32 v66, v66
                      v_exp_f32 v67, v67
                      s_nop 0
                      v_add_f32 v66, 1.0, v66
                      v_add_f32 v67, 1.0, v67
                      v_rcp_f32 v66, v66
                      v_rcp_f32 v67, v67
                      s_nop 0
                      v_mul_f32 v66, v66, v65
                      v_mul_f32 v67, v67, v64
                      v_cvt_pk_bf16_f32 v{68+2*j+h2}, v66, v67""")
        for j in range(4):
            k(f"buffer_store_dwordx2 v[{68+2*j}:{69+2*j}], v10, s[52:55], 0 offen offset:{16*j}")
    def epilogue_y():
        k(f"""v_and_b32 v10, 31, v2
              s_lshl_b32 s34, s22, 7
              s_lshl_b32 s39, s36, 6
              s_add_u32 s34, s34, s39
              v_add_u32 v10, s34, v10
              v_lshlrev_b32 v12, 1, v10
              buffer_load_ushort v72, v12, s[48:51], 0 offen
              buffer_load_ushort v73, v12, s[48:51], 0 offen offset:64
              s_mov_b32 s39, 1280
              v_mul_lo_u32 v10, v10, s39
              v_lshrrev_b32 v11, 5, v2
              v_lshlrev_b32 v11, 3, v11
              s_lshl_b32 s34, s23, 7
              s_lshl_b32 s39, s35, 6
              s_add_u32 s34, s34, s39
              v_add_u32 v11, s34, v11
              v_add_u32 v10, v10, v11
              v_add_u32 v11, {32*1280}, v10
              s_waitcnt vmcnt(0)
              v_lshlrev_b32 v72, 16, v72
              v_lshlrev_b32 v73, 16, v73
              s_nop 7""")
        for a_i, (ab, b2r, ad) in enumerate(((ACC, 72, 10), (ACC2, 73, 11))):
            for j in range(4):
                for h2 in range(2):
                    a = ab + 4*j + 2*h2
                    k(f"""v_cvt_pk_bf16_f32 v96, v{a}, v{a+1}
                          v_lshlrev_b32 v97, 16, v96
                          v_and_b32 v96, 0xffff0000, v96
                          v_add_f32 v97, v97, v{b2r}
                          v_add_f32 v96, v96, v{b2r}
                          v_cvt_pk_bf16_f32 v{100+8*a_i+2*j+h2}, v97, v96""")
            for j in range(4):
                r = 100 + 8*a_i + 2*j
                k(f"buffer_store_dwordx2 v[{r}:{r+1}], v{ad}, s[52:55], 0 offen offset:{16*j}")
    k(f"s_cmp_ge_u32 s61, {NT}\n s_cbranch_scc1 {T}_KVONLY")
    for gemm in (True, False):
        if not gemm: k.label(f"{T}_KVONLY")
        vm = VM()
        def KV(c):
            kv_dma(c); vm.add(("kv", c), 4)
        def G(t):
            vm.add(("g", t), g_dma(t))
        def UU(t):
            vm.add(("u", t), u_dma(t))
        KV(0); KV(1)
        if gemm: G(0)
        KV(2)
        if gemm: G(1)
        for ph in range(NPH):
            p = ph
            need = [("kv", ph), ("kv", min(ph + 1, NPH - 1))]
            if gemm and p < NSTEP: need += [("g", p)]
            if STAMP and gemm and ph < 16:
                k(f"s_memtime s[64:65]\n s_waitcnt lgkmcnt(0)\n v_writelane_b32 v123, s64, {3*ph}")
                k(f"s_waitcnt vmcnt({vm.wait_for(need)})")
                k(f"s_memtime s[64:65]\n s_waitcnt lgkmcnt(0)\n v_writelane_b32 v123, s64, {3*ph+1}")
                k("s_barrier")
                k(f"s_memtime s[64:65]\n s_waitcnt lgkmcnt(0)\n v_writelane_b32 v123, s64, {3*ph+2}")
            else:
                k(f"s_waitcnt vmcnt({vm.wait_for(need)})\n s_barrier")
            save = k.L; k.L = []
            if ph == 6:
                srd(k, 72, 66, 67, 1536*2048*2)
                srd(k, 76, 68, 69, 640*640*2)
                k(f"""s_lshl_b32 s34, s2, 2
                      s_add_u32 s34, s34, s3
                      s_mul_i32 s39, s34, 6144
                      v_lshlrev_b32 v15, 7, v2
                      buffer_load_dword v122, v15, s[72:75], s39 offen
                      s_lshl_b32 s39, s34, 13
                      buffer_load_dword v121, v15, s[76:79], s39 offen""")
                vm.add("pf", 2)
            if ph + 3 < NPH: KV(ph + 3)
            if gemm and p + 2 < NSTEP: G(p + 2)
            lines = k.L; k.L = save
            chunks = []; cur = []; inbr = False
            for ln in lines:
                cur.append(ln)
                if "buffer_load" in ln and "v9," not in ln:
                    chunks.append(cur); cur = []
                if "exec, -1" in ln:
                    chunks.append(cur); cur = []
            assert not cur
            def emit_chunks(n):
                for _ in range(n):
                    if chunks: k.L += chunks.pop(0)
            if gemm and p < NSTEP:
                b = (p % NG) * STG
                cnt = []
                hi = b >= 65536
                bo = b - 65536 if hi else b
                def rd(kk):
                    if not half:
                        c = frag_read(k, opM2 if hi else opM, KS, kk, bo, FM + 4*(kk % 3), 0)
                        c += frag_read(k, opN2 if hi else opN, KS, kk, bo + TS, FN + 4*(kk % 3), 0)
                    else:
                        c = frag_read(k, opU, KS, kk, (p % 2)*TS, FM + 4*(kk % 3), 15)
                        c += frag_read(k, opNa2 if hi else opNa, KS, kk, bo, FN + 4*(kk % 3), 0)
                        c += frag_read(k, opNb2 if hi else opNb, KS, kk, bo, FN2 + 4*(kk % 3), 0)
                    cnt.append(c)
                rd(0); rd(1)
                emit_chunks(2)
                for kk in range(nk):
                    if kk + 2 < nk: rd(kk + 2)
                    k(f"s_waitcnt lgkmcnt({sum(cnt[kk+1:])})")
                    bb = FN + 4*(kk % 3)
                    c = "0" if (p == 0 and kk == 0) else f"v[{ACC}:{ACC+15}]"
                    a = FM + 4*(kk % 3)
                    k(f"v_mfma_f32_32x32x16_bf16 v[{ACC}:{ACC+15}], v[{a}:{a+3}], v[{bb}:{bb+3}], {c}")
                    if half:
                        b2_ = FN2 + 4*(kk % 3)
                        c = "0" if (p == 0 and kk == 0) else f"v[{ACC2}:{ACC2+15}]"
                        k(f"v_mfma_f32_32x32x16_bf16 v[{ACC2}:{ACC2+15}], v[{a}:{a+3}], v[{b2_}:{b2_+3}], {c}")
                    emit_chunks(2)
                emit_chunks(99)
                if p == NSTEP - 1:
                    epilogue_y() if half else epilogue_u()
                    vm.ops = []
            else:
                emit_chunks(99)
        if STAMP and gemm:
            srd_off(k, 52, 20, 21, L.END + (2+half)*(1<<20), 1<<20)
            k(f"""s_lshl_b32 s34, s2, 2
                  s_add_u32 s34, s34, s3
                  s_lshl_b32 s34, s34, 8
                  v_lshlrev_b32 v10, 2, v2
                  buffer_store_dword v123, v10, s[52:55], s34 offen""")
        k("s_endpgm")
    k.label(f"{T}_END")
    k("s_endpgm")
    return k.text(), dict(vgpr=124, sgpr=84, lds=G0 + NG*STG + (2*TS if half else 0), grid=256, block=768)

def gen_k3():
    k = K(); k.endl = "K3_END"
    prologue(k, 320)
    k(f"""s_load_dwordx2 s[20:21], s[0:1], {KOFF['ws']}
          s_load_dwordx2 s[4:5], s[0:1], {KOFF['wo']}
          s_load_dwordx2 s[24:25], s[0:1], {KOFF['out']}
          s_waitcnt lgkmcnt(0)""")
    srd(k, 8, 4, 5, 640*640*2)
    srd_off(k, 12, 20, 21, L.O, 2048*640*2)
    srd_off(k, 16, 20, 21, L.BB, 2048*640*2)
    srd_off(k, 48, 20, 21, L.G, 2048*4)
    srd(k, 52, 24, 25, 2048*640*2)
    KS, NS = 64, 4
    ipw = 2
    k(f"""s_and_b32 s60, s2, 7
          s_lshr_b32 s61, s2, 3
          s_mul_hi_u32 s28, s61, 0x33333334
          s_mul_i32 s29, s28, 5
          s_sub_u32 s29, s61, s29
          s_and_b32 s34, s60, 3
          s_lshl_b32 s34, s34, 3
          s_add_u32 s28, s28, s34
          s_lshr_b32 s34, s60, 2
          s_mul_i32 s34, s34, 5
          s_add_u32 s29, s29, s34
          s_mov_b32 s30, 1280
          s_lshl_b32 s33, s3, 11
          s_and_b32 s35, s3, 1
          s_lshr_b32 s36, s3, 1
          s_mul_i32 s58, s3, {ipw*8*1280}
          s_lshl_b32 s34, s29, 7
          s_add_u32 s58, s58, s34
          s_lshl_b32 s59, s28, 6
          s_mul_i32 s34, s3, {ipw*8}
          s_add_u32 s59, s59, s34
          s_mul_i32 s59, s59, 1280""")
    tr_voff(k, 3, 2, 30, 10, 11)
    dir_voff64(k, [4, 5], 2, 30, 10, 11)
    k("s_mov_b32 s37, s35"); tr_rd(k, 6, 2, 37, 10, 11)
    k("s_mov_b32 s37, s36"); dir_rd(k, 9, 2, 37, KS, 10, 11)
    opWo = Opnd('tr', 8, 1280, [3], 58, 6)
    opO = Opnd('dir', 12, 1280, [4, 5], 59, 9)
    AA = 16
    k(f"""v_and_b32 v10, 31, v2
          s_lshl_b32 s34, s28, 6
          s_lshl_b32 s39, s36, 5
          s_add_u32 s34, s34, s39
          v_add_u32 v10, s34, v10
          v_lshlrev_b32 v11, 2, v10
          buffer_load_dword v60, v11, s[48:51], 0 offen
          v_mul_lo_u32 v10, v10, s30
          v_lshrrev_b32 v11, 5, v2
          v_lshlrev_b32 v11, 3, v11
          v_add_u32 v10, v10, v11
          s_lshl_b32 s34, s29, 7
          s_lshl_b32 s39, s35, 6
          s_add_u32 s34, s34, s39
          v_add_u32 v61, s34, v10""")
    for j in range(4):
        k(f"buffer_load_dwordx2 v[{64+2*j}:{65+2*j}], v61, s[16:19], 0 offen offset:{16*j}")
    k("s_waitcnt vmcnt(0)")
    steps = [(opWo, opO, t*KS, t*KS, AA, t == 0) for t in range(640 // KS)]
    gemm_ring(k, steps, KS, NS, 0, 33, 34, 32, 44, 12)
    k(f"""v_sub_f32 v15, 1.0, v60
          v_cvt_pk_bf16_f32 v15, v15, v15
          v_and_b32 v15, 0xffff0000, v15
          s_nop 7
          s_nop 3""")
    for j in range(4):
        for h2 in range(2):
            a = AA + 4*j + 2*h2; b = 64 + 2*j + h2
            k(f"""v_cvt_pk_bf16_f32 v56, v{a}, v{a+1}
                  v_lshlrev_b32 v58, 16, v56
                  v_and_b32 v56, 0xffff0000, v56
                  v_lshlrev_b32 v59, 16, v{b}
                  v_and_b32 v57, 0xffff0000, v{b}
                  v_mul_f32 v58, v58, v60
                  v_mul_f32 v56, v56, v60
                  v_mul_f32 v59, v59, v15
                  v_mul_f32 v57, v57, v15
                  v_cvt_pk_bf16_f32 v56, v58, v56
                  v_cvt_pk_bf16_f32 v57, v59, v57
                  v_lshlrev_b32 v58, 16, v56
                  v_and_b32 v56, 0xffff0000, v56
                  v_lshlrev_b32 v59, 16, v57
                  v_and_b32 v57, 0xffff0000, v57
                  v_add_f32 v58, v58, v59
                  v_add_f32 v56, v56, v57
                  v_cvt_pk_bf16_f32 v{84+2*j+h2}, v58, v56""")
    for j in range(4):
        k(f"buffer_store_dwordx2 v[{84+2*j}:{85+2*j}], v61, s[52:55], 0 offen offset:{16*j}")
    k.label("K3_END")
    k("s_endpgm")
    return k.text(), dict(vgpr=96, sgpr=72, lds=NS*2*64*KS*2, grid=320, block=256)
```

```python
from gen import *
import layout as L
from gen2 import VM
import os
STAMP = os.environ.get('STAMP')

KS = 128
TA, TB = 20480, 16384
STG = TA + TB

def gemm80(k, T, mode, NS):
    k(f"""s_and_b32 s60, s2, 7
          s_lshr_b32 s61, s2, 3
          s_lshr_b32 s28, s61, 2
          s_and_b32 s29, s61, 3
          s_and_b32 s34, s60, 3
          s_lshl_b32 s34, s34, 3
          s_add_u32 s28, s28, s34
          s_lshr_b32 s34, s60, 2
          s_lshl_b32 s34, s34, 2
          s_add_u32 s29, s29, s34
          s_mov_b32 s30, 1280
          s_mov_b32 s56, 3072
          s_mov_b32 s57, 4096
          v_and_b32 v4, 15, v2
          v_lshrrev_b32 v5, 4, v2
          s_cmp_ge_u32 s3, 4
          s_cbranch_scc1 {T}_LD""")
    NA = 5; NB = 12 if mode == 'k3' else 0
    steps = [("B", t) for t in range(NB)] + [("A", t) for t in range(NA)]
    n = len(steps)
    k(f"""v_lshrrev_b32 v10, 1, v5
          v_lshlrev_b32 v10, 4, v10
          v_and_b32 v11, 1, v5
          v_lshlrev_b32 v11, 2, v11
          v_add_u32 v10, v10, v11
          v_lshrrev_b32 v11, 2, v4
          v_add_u32 v10, v10, v11
          v_mul_u32_u24 v10, 160, v10
          v_and_b32 v11, 3, v4
          v_lshlrev_b32 v11, 3, v11
          v_add_u32 v6, v10, v11
          v_xor_b32 v10, v5, v4
          v_lshlrev_b32 v10, 4, v10
          v_lshlrev_b32 v11, 8, v4
          v_add_u32 v7, v10, v11
          s_lshl_b32 s65, s3, 12
          v_add_u32 v8, s65, v7
          v_and_b32 v10, 3, v4
          v_lshlrev_b32 v10, 3, v10
          s_lshl_b32 s34, s3, 5
          v_add_u32 v10, s34, v10
          v_lshrrev_b32 v11, 3, v4
          v_lshlrev_b32 v11, 6, v11
          v_xor_b32 v10, v10, v11
          v_and_b32 v11, 1, v5
          v_lshlrev_b32 v11, 5, v11
          v_xor_b32 v10, v10, v11
          v_lshlrev_b32 v11, 3, v5
          v_lshrrev_b32 v12, 2, v4
          v_add_u32 v11, v11, v12
          v_lshlrev_b32 v11, 7, v11
          v_add_u32 v9, v10, v11""")
    k(f"""s_lshl_b32 s34, s28, 6
          s_lshl_b32 s39, s3, 4
          s_add_u32 s34, s34, s39
          v_add_u32 v10, s34, v4""")
    if mode == 'k3':
        k(f"""v_lshlrev_b32 v11, 2, v10
              v_lshlrev_b32 v12, 1, v10
              buffer_load_dword v80, v11, s[48:51], 0 offen
              buffer_load_ushort v81, v12, s[44:47], 0 offen""")
    k(f"""v_mul_lo_u32 v10, v10, s30
          v_lshlrev_b32 v11, 3, v5
          v_add_u32 v10, v10, v11
          s_mul_i32 s34, s29, 160
          v_add_u32 v82, s34, v10""")
    AA, AB = 16, 36
    FA, FB = 84, 124
    for i in range(n):
        part, t = steps[i]
        if STAMP and mode == 'k3':
            k(f"s_memtime s[66:67]\n s_waitcnt lgkmcnt(0)\n v_writelane_b32 v133, s66, {3*i}\n v_writelane_b32 v133, s66, {3*i+1}")
            k("s_barrier")
            k(f"s_memtime s[66:67]\n s_waitcnt lgkmcnt(0)\n v_writelane_b32 v133, s66, {3*i+2}")
        else:
            k("s_barrier")
        b = (i % NS) * STG
        ra0, rb0 = ((6, 8) if part == "A" else (7, 9))
        k(f"v_add_u32 v76, {b}, v{ra0}\n v_add_u32 v77, {b}, v{rb0}")
        ra, rb_ = 76, 77
        acc = AA if part == "A" else AB
        cnt = []
        def rd(kk):
            fa = FA + 20*(kk % 2); fb = FB + 4*(kk % 2)
            c = 0
            if part == "A":
                if kk: k(f"v_xor_b32 v15, {kk*64}, v{rb_}")
                k(f"ds_read_b128 v[{fb}:{fb+3}], v{15 if kk else rb_} offset:{TA}"); c += 1
                for mt in range(5):
                    for rdi in range(2):
                        k(f"ds_read_b64_tr_b16 v[{fa+4*mt+2*rdi}:{fa+4*mt+2*rdi+1}], v{ra} offset:{(32*kk + 8*rdi)*160 + mt*32}"); c += 1
            else:
                for rdi in range(2):
                    k(f"ds_read_b64_tr_b16 v[{fb+2*rdi}:{fb+2*rdi+1}], v{rb_} offset:{TA + (32*kk + 4*rdi)*128}"); c += 1
                if kk: k(f"v_xor_b32 v15, {kk*64}, v{ra}")
                for mt in range(5):
                    k(f"ds_read_b128 v[{fa+4*mt}:{fa+4*mt+3}], v{15 if kk else ra} offset:{mt*4096}"); c += 1
            cnt.append(c)
        rd(0)
        for kk in range(4):
            if kk + 1 < 4: rd(kk + 1)
            k(f"s_waitcnt lgkmcnt({sum(cnt[kk+1:])})")
            fa = FA + 20*(kk % 2); fb = FB + 4*(kk % 2)
            for mt in range(5):
                a = acc + 4*mt
                c = "0" if (t == 0 and kk == 0) else f"v[{a}:{a+3}]"
                k(f"v_mfma_f32_16x16x32_bf16 v[{a}:{a+3}], v[{fa+4*mt}:{fa+4*mt+3}], v[{fb}:{fb+3}], {c}")
    if mode == 'k3':
        k(f"""s_waitcnt vmcnt(0)
              v_lshlrev_b32 v81, 16, v81
              v_sub_f32 v83, 1.0, v80
              v_cvt_pk_bf16_f32 v83, v83, v83
              v_and_b32 v83, 0xffff0000, v83
              s_nop 7""")
        for mt in range(5):
            for h2 in range(2):
                a = AA + 4*mt + 2*h2; b = AB + 4*mt + 2*h2
                k(f"""v_cvt_pk_bf16_f32 v56, v{a}, v{a+1}
                      v_cvt_pk_bf16_f32 v57, v{b}, v{b+1}
                      v_lshlrev_b32 v58, 16, v56
                      v_and_b32 v56, 0xffff0000, v56
                      v_lshlrev_b32 v59, 16, v57
                      v_and_b32 v57, 0xffff0000, v57
                      v_add_f32 v59, v59, v81
                      v_add_f32 v57, v57, v81
                      v_cvt_pk_bf16_f32 v57, v59, v57
                      v_lshlrev_b32 v59, 16, v57
                      v_and_b32 v57, 0xffff0000, v57
                      v_mul_f32 v58, v58, v80
                      v_mul_f32 v56, v56, v80
                      v_mul_f32 v59, v59, v83
                      v_mul_f32 v57, v57, v83
                      v_cvt_pk_bf16_f32 v56, v58, v56
                      v_cvt_pk_bf16_f32 v57, v59, v57
                      v_lshlrev_b32 v58, 16, v56
                      v_and_b32 v56, 0xffff0000, v56
                      v_lshlrev_b32 v59, 16, v57
                      v_and_b32 v57, 0xffff0000, v57
                      v_add_f32 v58, v58, v59
                      v_add_f32 v56, v56, v57
                      v_cvt_pk_bf16_f32 v{84+2*mt+h2}, v58, v56""")
    else:
        k("s_mov_b32 s34, 0x3ea52b5c\n s_nop 7\n s_nop 1")
        for j in range(20):
            k(f"v_mul_f32 v{AA+j}, s34, v{AA+j}")
        for mt in range(5):
            for h2 in range(2):
                a = AA + 4*mt + 2*h2
                k(f"v_cvt_pk_bf16_f32 v{84+2*mt+h2}, v{a}, v{a+1}")
    for mt in range(5):
        k(f"buffer_store_dwordx2 v[{84+2*mt}:{85+2*mt}], v82, s[52:55], 0 offen offset:{32*mt}")
    if STAMP and mode == 'k3':
        srd_off(k, 68, 20, 21, L.END + 3*(1<<20), 1<<20)
        k(f"""s_lshl_b32 s34, s2, 3
              s_add_u32 s34, s34, s3
              s_add_u32 s34, s34, 0
              s_lshl_b32 s34, s34, 8
              v_lshlrev_b32 v10, 2, v2
              buffer_store_dword v133, v10, s[68:71], s34 offen""")
    k("s_endpgm")
    k.label(f"{T}_LD")
    k("s_sub_u32 s3, s3, 4")
    for j in range(5):
        d = 60 + j
        k(f"""v_add_u32 v10, {64*j}, v2
              v_mul_u32_u24 v11, 0x199a, v10
              v_lshrrev_b32 v11, 16, v11
              v_mul_u32_u24 v12, 10, v11
              v_sub_u32 v12, v10, v12
              v_and_b32 v13, 0x13, v11
              v_and_b32 v14, 4, v11
              v_lshlrev_b32 v14, 1, v14
              v_or_b32 v13, v13, v14
              v_and_b32 v14, 8, v11
              v_lshrrev_b32 v14, 1, v14
              v_or_b32 v13, v13, v14
              v_mul_lo_u32 v13, v13, s30
              v_lshlrev_b32 v12, 4, v12
              v_add_u32 v{d}, v13, v12""")
    k("s_mul_i32 s35, s3, 20")
    dir_voff128(k, [70, 71, 72, 73], 2, 30, 10, 11)
    if mode == 'k3':
        for j in range(5):
            d = 65 + j
            k(f"""v_add_u32 v10, {4*j}, v5
                  v_add_u32 v11, s35, v10
                  v_and_b32 v11, 15, v11
                  v_xor_b32 v11, v11, v4
                  v_lshlrev_b32 v11, 4, v11
                  v_mul_lo_u32 v10, v10, s56
                  v_add_u32 v{d}, v10, v11""")
        for par in range(2):
            d = 74 + par
            k(f"""v_lshrrev_b32 v10, 3, v2
                  v_mul_lo_u32 v10, v10, s57
                  v_lshrrev_b32 v11, 4, v2
                  v_and_b32 v11, 1, v11
                  v_lshlrev_b32 v11, 2, v11
                  v_and_b32 v12, 7, v2
                  v_xor_b32 v12, v12, v11
                  v_xor_b32 v12, {2*par}, v12
                  v_lshlrev_b32 v12, 4, v12
                  v_add_u32 v{d}, v12, v10""")
    k(f"""s_mul_i32 s58, s3, {32*1280}
          s_mul_i32 s34, s29, 160
          s_add_u32 s58, s58, s34
          s_mul_i32 s59, s29, 80
          s_add_u32 s59, s59, s35
          s_mul_i32 s59, s59, 3072
          s_lshl_b32 s62, s28, 6
          s_lshl_b32 s34, s3, 4
          s_add_u32 s62, s62, s34
          s_mul_i32 s62, s62, 1280
          s_lshl_b32 s63, s3, 17
          s_lshl_b32 s34, s28, 7
          s_add_u32 s63, s63, s34
          s_mul_i32 s64, s3, 5120
          s_lshl_b32 s65, s3, 12""")
    vm = VM()
    def issue(i):
        part, t = steps[i]
        b = (i % NS) * STG
        if part == "A":
            for j in range(5):
                k(f"""s_add_u32 m0, s64, {b + j*1024}
                      s_add_u32 s34, s58, {t*KS*1280}
                      buffer_load_dwordx4 v{60+j}, s[8:11], s34 offen lds""")
            for j in range(4):
                k(f"""s_add_u32 m0, s65, {b + TA + j*1024}
                      s_add_u32 s34, s62, {4*j*1280 + t*KS*2}
                      buffer_load_dwordx4 v{70+j}, s[12:15], s34 offen lds""")
        else:
            for j in range(5):
                k(f"""s_add_u32 m0, s64, {b + j*1024}
                      s_add_u32 s34, s59, {t*KS*2}
                      buffer_load_dwordx4 v{65+j}, s[16:19], s34 offen lds""")
            for j in range(4):
                k(f"""s_add_u32 m0, s65, {b + TA + j*1024}
                      s_add_u32 s34, s63, {(t*KS + 8*j)*4096}
                      buffer_load_dwordx4 v{74+(j%2)}, s[40:43], s34 offen lds""")
        vm.add(i, 9)
    for i in range(min(NS - 1, n)): issue(i)
    for i in range(n):
        if STAMP and mode == 'k3':
            k(f"s_memtime s[66:67]\n s_waitcnt lgkmcnt(0)\n v_writelane_b32 v133, s66, {3*i}")
            k(f"s_waitcnt vmcnt({vm.wait_for([i])})")
            k(f"s_memtime s[66:67]\n s_waitcnt lgkmcnt(0)\n v_writelane_b32 v133, s66, {3*i+1}")
            k("s_barrier")
            k(f"s_memtime s[66:67]\n s_waitcnt lgkmcnt(0)\n v_writelane_b32 v133, s66, {3*i+2}")
        else:
            k(f"s_waitcnt vmcnt({vm.wait_for([i])})\n s_barrier")
        if i + NS - 1 < n: issue(i + NS - 1)
    if STAMP and mode == 'k3':
        srd_off(k, 68, 20, 21, L.END + 3*(1<<20), 1<<20)
        k(f"""s_lshl_b32 s34, s2, 3
              s_add_u32 s34, s34, s3
              s_add_u32 s34, s34, 4
              s_lshl_b32 s34, s34, 8
              v_lshlrev_b32 v10, 2, v2
              buffer_store_dword v133, v10, s[68:71], s34 offen""")
    k("s_endpgm")

def gen_k3():
    k = K(); k.endl = "K3_END"
    prologue(k, 256)
    k(f"""s_load_dwordx2 s[20:21], s[0:1], {KOFF['ws']}
          s_load_dwordx2 s[4:5], s[0:1], {KOFF['wo']}
          s_load_dwordx2 s[6:7], s[0:1], {KOFF['w2']}
          s_load_dwordx2 s[22:23], s[0:1], {KOFF['b2']}
          s_load_dwordx2 s[24:25], s[0:1], {KOFF['out']}
          s_waitcnt lgkmcnt(0)""")
    srd(k, 8, 4, 5, 640*640*2)
    srd_off(k, 12, 20, 21, L.O, 2048*640*2)
    srd_off(k, 16, 20, 21, L.U, 640*1536*2)
    srd(k, 40, 6, 7, 1536*2048*2)
    srd(k, 44, 22, 23, 2048*2)
    srd_off(k, 48, 20, 21, L.G, 2048*4)
    srd(k, 52, 24, 25, 2048*640*2)
    NS = 4
    gemm80(k, "K3", 'k3', NS)
    k.label("K3_END")
    k("s_endpgm")
    return k.text(), dict(vgpr=136, sgpr=80, lds=NS*STG, grid=256, block=512)
```

```python
import sys
import layout as L
NAME = "gated_mix__grouped_kv_mqa__mixer_token_mlp__prompt"

class K:
    def __init__(self):
        self.L = []
        self.uid = 0
    def __call__(self, s):
        for line in s.strip("\n").split("\n"):
            self.L.append("    " + line.strip())
    def label(self, n):
        self.L.append(n + ":")
    def new(self, p):
        self.uid += 1
        return f"{p}_{self.uid}"
    def text(self):
        return "\n".join(self.L) + "\n"

def srd(k, d, lo, hi, size):
    k(f"""s_mov_b32 s{d}, s{lo}
          s_and_b32 s{d+1}, s{hi}, 0xffff
          s_mov_b32 s{d+2}, {size}
          s_mov_b32 s{d+3}, 0x00020000""")

def srd_off(k, d, lo, hi, off, size):
    k(f"""s_add_u32 s{d}, s{lo}, {off}
          s_addc_u32 s{d+1}, s{hi}, 0
          s_and_b32 s{d+1}, s{d+1}, 0xffff
          s_mov_b32 s{d+2}, {size}
          s_mov_b32 s{d+3}, 0x00020000""")

KOFF = dict(x=0, wq=8, wk=16, wv=24, wo=32, bx=40, w1=48, b1=56, w2=64, b2=72, gw=80, out=88, dbg=96, ws=104)

class Opnd:
    def __init__(self, typ, srd, pitch, voff, sbase, rd):
        self.typ = typ
        self.srd = srd
        self.pitch = pitch
        self.voff = voff
        self.sbase = sbase
        self.rd = rd

def dma_tile(k, op, KS, k0, ldsoff, s_wlds, s_tmp):
    ipw = (64 * KS * 2 // 1024) // 4
    for ii in range(ipw):
        if op.typ == 'tr':
            g = (k0 + 8 * ii) * op.pitch
            v = op.voff[0]
        else:
            rows_per = 1024 // (KS * 2)
            g = rows_per * ii * op.pitch + k0 * 2
            v = op.voff[ii % len(op.voff)]
        k(f"s_add_u32 m0, s{s_wlds}, {ldsoff + ii * 1024}")
        k(f"s_add_u32 s{s_tmp}, s{op.sbase}, {g}")
        k(f"buffer_load_dwordx4 v{v}, s[{op.srd}:{op.srd+3}], s{s_tmp} offen lds")

def frag_read(k, op, KS, kk, ldsoff, dst, vtmp):
    if op.typ == 'tr':
        k(f"ds_read_b64_tr_b16 v[{dst}:{dst+1}], v{op.rd} offset:{ldsoff + (16*kk)*128}")
        k(f"ds_read_b64_tr_b16 v[{dst+2}:{dst+3}], v{op.rd} offset:{ldsoff + (16*kk+4)*128}")
        return 2
    else:
        if kk == 0:
            k(f"ds_read_b128 v[{dst}:{dst+3}], v{op.rd} offset:{ldsoff}")
        else:
            k(f"v_xor_b32 v{vtmp}, {kk*32}, v{op.rd}")
            k(f"ds_read_b128 v[{dst}:{dst+3}], v{vtmp} offset:{ldsoff}")
        return 1

def gemm_ring(k, steps, KS, NS, lds0, s_wlds, s_tmp, fragM, fragN, vtmp, extra_vm=0, pre_issued=False, barrier_hook=None):
    TS = 64 * KS * 2
    ipw = (TS // 1024) // 4
    D = 2 * ipw
    n = len(steps)
    def issue(t):
        opM, opN, k0M, k0N, acc, first = steps[t]
        b = lds0 + (t % NS) * 2 * TS
        dma_tile(k, opM, KS, k0M, b, s_wlds, s_tmp)
        dma_tile(k, opN, KS, k0N, b + TS, s_wlds, s_tmp)
    if not pre_issued:
        for t in range(min(NS - 1, n)):
            issue(t)
    nk = KS // 16
    for t in range(n):
        opM, opN, k0M, k0N, acc, first = steps[t]
        inflight_after = min(n - 1, t + NS - 2) - t
        k(f"s_waitcnt vmcnt({inflight_after * D})")
        k("s_barrier")
        if t + NS - 1 < n:
            issue(t + NS - 1)
        b = lds0 + (t % NS) * 2 * TS
        cnt = []
        def rd(kk):
            c = frag_read(k, opM, KS, kk, b, fragM + 4 * (kk % 3), vtmp)
            c += frag_read(k, opN, KS, kk, b + TS, fragN + 4 * (kk % 3), vtmp + 1)
            cnt.append(c)
        rd(0); rd(1)
        for kk in range(nk):
            if kk + 2 < nk:
                rd(kk + 2)
            pend = sum(cnt[kk + 1:])
            k(f"s_waitcnt lgkmcnt({pend})")
            a = fragM + 4 * (kk % 3); bb = fragN + 4 * (kk % 3)
            c = "0" if (first and kk == 0) else f"v[{acc}:{acc+15}]"
            k(f"v_mfma_f32_32x32x16_bf16 v[{acc}:{acc+15}], v[{a}:{a+3}], v[{bb}:{bb+3}], {c}")

def lane_setup_gemm(k, KS, vl, vt, tr_voff, dir_voff, tr_rd, dir_rd, wm_s=None):
    pass

def tr_voff(k, dst, vl, pitch_s, t0, t1):
    k(f"""v_lshrrev_b32 v{t0}, 3, v{vl}
          v_mul_lo_u32 v{t0}, v{t0}, s{pitch_s}
          v_lshrrev_b32 v{t1}, 4, v{vl}
          v_and_b32 v{t1}, 1, v{t1}
          v_lshlrev_b32 v{t1}, 2, v{t1}
          v_and_b32 v{dst}, 7, v{vl}
          v_xor_b32 v{dst}, v{dst}, v{t1}
          v_lshlrev_b32 v{dst}, 4, v{dst}
          v_add_u32 v{dst}, v{dst}, v{t0}""")

def dir_voff64(k, dsts, vl, pitch_s, t0, t1):
    for par, dst in enumerate(dsts):
        k(f"""v_lshrrev_b32 v{t0}, 3, v{vl}
              v_mul_lo_u32 v{t0}, v{t0}, s{pitch_s}
              v_lshrrev_b32 v{t1}, 4, v{vl}
              v_add_u32 v{t1}, {4*par}, v{t1}
              v_and_b32 v{dst}, 7, v{vl}
              v_xor_b32 v{dst}, v{dst}, v{t1}
              v_lshlrev_b32 v{dst}, 4, v{dst}
              v_add_u32 v{dst}, v{dst}, v{t0}""")

def dir_voff128(k, dsts, vl, pitch_s, t0, t1):
    for par, dst in enumerate(dsts):
        k(f"""v_lshrrev_b32 v{t0}, 4, v{vl}
              v_add_u32 v{t1}, {4*par}, v{t0}
              v_mul_lo_u32 v{t0}, v{t0}, s{pitch_s}
              v_and_b32 v{dst}, 15, v{vl}
              v_xor_b32 v{dst}, v{dst}, v{t1}
              v_lshlrev_b32 v{dst}, 4, v{dst}
              v_add_u32 v{dst}, v{dst}, v{t0}""")

def tr_rd(k, dst, vl, half_s, t0, t1):
    k(f"""v_and_b32 v{t0}, 3, v{vl}
          v_lshlrev_b32 v{t0}, 3, v{t0}
          v_lshrrev_b32 v{t1}, 4, v{vl}
          v_and_b32 v{t1}, 1, v{t1}
          v_lshlrev_b32 v{t1}, 5, v{t1}
          v_add_u32 v{t0}, v{t0}, v{t1}
          s_lshl_b32 s{half_s}, s{half_s}, 6
          v_add_u32 v{t0}, s{half_s}, v{t0}
          v_lshrrev_b32 v{t1}, 3, v{vl}
          v_and_b32 v{t1}, 1, v{t1}
          v_lshlrev_b32 v{t1}, 6, v{t1}
          v_xor_b32 v{t0}, v{t0}, v{t1}
          v_lshrrev_b32 v{t1}, 2, v{vl}
          v_and_b32 v{t1}, 3, v{t1}
          v_lshlrev_b32 v{t1}, 7, v{t1}
          v_add_u32 v{t0}, v{t0}, v{t1}
          v_lshrrev_b32 v{t1}, 5, v{vl}
          v_lshlrev_b32 v{t1}, 10, v{t1}
          v_add_u32 v{dst}, v{t0}, v{t1}""")

def dir_rd(k, dst, vl, half_s, KS, t0, t1):
    rb = KS * 2
    sh = {128: 7, 256: 8}[rb]
    k(f"""v_and_b32 v{t0}, 31, v{vl}
          s_lshl_b32 s{half_s}, s{half_s}, 5
          v_add_u32 v{t0}, s{half_s}, v{t0}""")
    if KS == 64:
        k(f"""v_lshrrev_b32 v{t1}, 1, v{t0}
              v_and_b32 v{t1}, 7, v{t1}""")
    else:
        k(f"v_and_b32 v{t1}, 15, v{t0}")
    k(f"""v_lshrrev_b32 v{dst}, 5, v{vl}
          v_xor_b32 v{dst}, v{dst}, v{t1}
          v_lshlrev_b32 v{dst}, 4, v{dst}
          v_lshlrev_b32 v{t0}, {sh}, v{t0}
          v_add_u32 v{dst}, v{dst}, v{t0}""")

def prologue(k, nwg):
    k(f"""s_cmp_ge_u32 s2, {nwg}
          s_cbranch_scc1 {k.endl}
          v_lshrrev_b32 v1, 6, v0
          v_and_b32 v2, 63, v0
          s_nop 0
          v_readfirstlane_b32 s3, v1""")

def gen_k1():
    k = K(); k.endl = "K1_END"
    prologue(k, 576)
    k(f"""s_load_dwordx2 s[4:5], s[0:1], {KOFF['x']}
          s_load_dwordx2 s[6:7], s[0:1], {KOFF['wq']}
          s_load_dwordx2 s[20:21], s[0:1], {KOFF['ws']}
          s_load_dwordx2 s[22:23], s[0:1], {KOFF['wk']}
          s_load_dwordx2 s[24:25], s[0:1], {KOFF['wv']}
          s_load_dwordx2 s[26:27], s[0:1], {KOFF['gw']}
          s_waitcnt lgkmcnt(0)""")
    srd(k, 8, 4, 5, 2048*640*2)
    k("""s_cmp_ge_u32 s2, 320
         s_cbranch_scc1 K1_ROWS""")
    srd(k, 12, 6, 7, 640*640*2)
    srd_off(k, 16, 20, 21, L.Q, 2048*640*2)
    KS, NS = 64, 3
    k("""s_and_b32 s60, s2, 7
         s_lshr_b32 s61, s2, 3
         s_mul_hi_u32 s28, s61, 0x33333334
         s_mul_i32 s29, s28, 5
         s_sub_u32 s29, s61, s29
         s_and_b32 s34, s60, 3
         s_lshl_b32 s34, s34, 3
         s_add_u32 s28, s28, s34
         s_lshr_b32 s34, s60, 2
         s_mul_i32 s34, s34, 5
         s_add_u32 s29, s29, s34
         s_mov_b32 s30, 1280""")
    ipw = 2
    k(f"""s_mul_i32 s31, s3, {ipw*8*1280}
          s_lshl_b32 s34, s29, 7
          s_add_u32 s31, s31, s34
          s_lshl_b32 s32, s28, 6
          s_mul_i32 s34, s3, {ipw*8}
          s_add_u32 s32, s32, s34
          s_mul_i32 s32, s32, 1280
          s_lshl_b32 s33, s3, {10+1}
          s_and_b32 s35, s3, 1
          s_lshr_b32 s36, s3, 1""")
    k("s_mov_b32 s37, s35\n s_mov_b32 s38, s36")
    tr_voff(k, 3, 2, 30, 10, 11)
    dir_voff64(k, [4, 5], 2, 30, 10, 11)
    tr_rd(k, 6, 2, 37, 10, 11)
    dir_rd(k, 7, 2, 38, KS, 10, 11)
    opM = Opnd('tr', 12, 1280, [3], 31, 6)
    opN = Opnd('dir', 8, 1280, [4, 5], 32, 7)
    ACC = 16
    steps = [(opM, opN, t*KS, t*KS, ACC, t == 0) for t in range(640 // KS)]
    gemm_ring(k, steps, KS, NS, 0, 33, 34, 32, 44, 12)
    k(f"""v_and_b32 v10, 31, v2
          s_lshl_b32 s34, s28, 6
          s_lshl_b32 s39, s36, 5
          s_add_u32 s34, s34, s39
          v_add_u32 v10, s34, v10
          v_mul_lo_u32 v10, v10, s30
          v_lshrrev_b32 v11, 5, v2
          v_lshlrev_b32 v11, 3, v11
          v_add_u32 v10, v10, v11
          s_lshl_b32 s34, s29, 7
          s_lshl_b32 s39, s35, 6
          s_add_u32 s34, s34, s39
          v_add_u32 v10, s34, v10
          s_nop 7
          s_nop 3""")
    k("s_mov_b32 s34, 0x3ea52b5c")
    for j in range(16):
        k(f"v_mul_f32 v{ACC+j}, s34, v{ACC+j}")
    for j in range(4):
        a = ACC + 4*j
        k(f"""v_cvt_pk_bf16_f32 v{56+2*j}, v{a}, v{a+1}
              v_cvt_pk_bf16_f32 v{57+2*j}, v{a+2}, v{a+3}""")
    for j in range(4):
        k(f"buffer_store_dwordx2 v[{56+2*j}:{57+2*j}], v10, s[16:19], 0 offen offset:{16*j}")
    k("s_endpgm")
    k.label("K1_ROWS")
    k("s_mov_b32 s30, 1280\n s_cmp_ge_u32 s2, 448\n s_cbranch_scc1 K1_KV")
    k("s_sub_u32 s28, s2, 320")
    srd(k, 40, 26, 27, 640*2)
    srd_off(k, 44, 20, 21, L.H, 2048*640*2)
    srd_off(k, 48, 20, 21, L.G, 2048*4)
    k(f"""v_lshrrev_b32 v4, 4, v0
          v_and_b32 v5, 15, v0
          s_lshl_b32 s34, s28, 4
          v_add_u32 v6, s34, v4
          v_mul_lo_u32 v7, v6, s30
          v_lshlrev_b32 v8, 4, v5
          v_add_u32 v7, v7, v8""")
    NP = 20
    X0 = 24; GW0 = 44; XF = 64
    for i in range(5):
        k(f"buffer_load_dwordx4 v[{X0+4*i}:{X0+4*i+3}], v7, s[8:11], 0 offen offset:{256*i}")
    for i in range(5):
        k(f"buffer_load_dwordx4 v[{GW0+4*i}:{GW0+4*i+3}], v8, s[40:43], 0 offen offset:{256*i}")
    k("s_waitcnt vmcnt(5)\n v_mov_b32 v10, 0\n v_mov_b32 v11, 0")
    for i in range(NP):
        k(f"""v_lshlrev_b32 v{XF+2*i}, 16, v{X0+i}
              v_and_b32 v{XF+2*i+1}, 0xffff0000, v{X0+i}
              v_add_f32 v10, v10, v{XF+2*i}
              v_add_f32 v10, v10, v{XF+2*i+1}""")
    def red16(r, t):
        for m in (0x041F, 0x081F, 0x101F, 0x201F):
            k(f"""ds_swizzle_b32 v{t}, v{r} offset:{m}
                  s_waitcnt lgkmcnt(0)
                  v_add_f32 v{r}, v{r}, v{t}""")
    red16(10, 12)
    k(f"""s_mov_b32 s34, 0x3acccccd
          v_mul_f32 v10, s34, v10
          v_mov_b32 v16, 0""")
    for i in range(2*NP):
        k(f"""v_sub_f32 v12, v{XF+i}, v10
              v_fmac_f32 v16, v12, v12""")
    red16(16, 12)
    k("s_waitcnt vmcnt(0)")
    for i in range(NP):
        gr = GW0 + i
        k(f"""v_lshlrev_b32 v14, 16, v{gr}
              v_and_b32 v15, 0xffff0000, v{gr}
              v_mul_f32 v14, v{XF+2*i}, v14
              v_mul_f32 v15, v{XF+2*i+1}, v15
              v_cvt_pk_bf16_f32 v14, v14, v15
              v_lshlrev_b32 v15, 16, v14
              v_and_b32 v14, 0xffff0000, v14
              v_add_f32 v11, v11, v15
              v_add_f32 v11, v11, v14""")
    red16(11, 12)
    k(f"""v_mul_f32 v16, s34, v16
          v_cvt_pk_bf16_f32 v17, v10, v16
          v_lshlrev_b32 v18, 16, v17
          v_and_b32 v19, 0xffff0000, v17
          v_add_f32 v19, 0x3727c5ac, v19
          v_cvt_pk_bf16_f32 v19, v19, v19
          v_and_b32 v19, 0xffff0000, v19
          v_sqrt_f32 v19, v19
          s_nop 0
          v_cvt_pk_bf16_f32 v19, v19, v19
          v_and_b32 v19, 0xffff0000, v19
          v_rcp_f32 v20, v19
          s_nop 0""")
    for i in range(NP):
        k(f"""v_sub_f32 v12, v{XF+2*i}, v18
              v_sub_f32 v13, v{XF+2*i+1}, v18
              v_cvt_pk_bf16_f32 v12, v12, v13
              v_and_b32 v13, 0xffff0000, v12
              v_lshlrev_b32 v12, 16, v12
              v_mul_f32 v14, v12, v20
              v_mul_f32 v15, v13, v20
              v_fma_f32 v12, -v14, v19, v12
              v_fma_f32 v13, -v15, v19, v13
              v_fma_f32 v14, v12, v20, v14
              v_fma_f32 v15, v13, v20, v15
              v_cvt_pk_bf16_f32 v{X0+i}, v14, v15""")
    for i in range(5):
        k(f"buffer_store_dwordx4 v[{X0+4*i}:{X0+4*i+3}], v7, s[44:47], 0 offen offset:{256*i}")
    k(f"""v_cvt_pk_bf16_f32 v11, v11, v11
          v_and_b32 v11, 0xffff0000, v11
          v_mul_f32 v11, 0xbfb8aa3b, v11
          v_exp_f32 v11, v11
          s_nop 0
          v_add_f32 v11, 1.0, v11
          v_rcp_f32 v11, v11
          s_nop 0
          v_cvt_pk_bf16_f32 v11, v11, v11
          v_and_b32 v11, 0xffff0000, v11
          v_lshlrev_b32 v12, 2, v6
          v_cmp_eq_u32 vcc, 0, v5
          s_and_saveexec_b64 s[36:37], vcc
          buffer_store_dword v11, v12, s[48:51], 0 offen
          s_endpgm""")
    k.label("K1_KV")
    k("s_cmp_ge_u32 s2, 512\n s_cbranch_scc1 K1_PF")
    k("s_sub_u32 s28, s2, 448")
    srd(k, 12, 22, 23, 640*20*2)
    srd(k, 16, 24, 25, 640*20*2)
    srd_off(k, 52, 20, 21, L.KA, 2048*32)
    srd_off(k, 56, 20, 21, L.KB, 2048*8)
    srd_off(k, 60, 20, 21, L.VT, 21*4096)
    WVL = 26112
    k(f"""s_and_b32 s35, s3, 1
          s_lshr_b32 s36, s3, 1
          v_and_b32 v4, 15, v2
          v_lshrrev_b32 v5, 4, v2
          s_lshl_b32 s34, s28, 5
          s_lshl_b32 s37, s35, 4
          s_add_u32 s39, s34, s37
          v_add_u32 v6, s39, v4
          v_mul_lo_u32 v7, v6, s30
          v_lshlrev_b32 v8, 4, v5
          v_add_u32 v7, v7, v8
          v_lshlrev_b32 v3, 4, v2""")
    for i in range(7):
        lab = k.new("K1_SK")
        if i == 6:
            k(f"s_cmp_ge_u32 s3, 1\n s_cbranch_scc1 {lab}")
        k(f"""s_lshl_b32 s34, s3, 10
              s_add_u32 s34, s34, {i*4096}
              s_mov_b32 m0, s34
              s_nop 0
              buffer_load_dwordx4 v3, s[12:15], s34 offen lds
              s_add_u32 s37, s34, {WVL}
              s_mov_b32 m0, s37
              s_nop 0
              buffer_load_dwordx4 v3, s[16:19], s34 offen lds""")
        if i == 6:
            k.label(lab)
    XF = 64
    for ks in range(20):
        k(f"buffer_load_dwordx4 v[{XF+4*ks}:{XF+4*ks+3}], v7, s[8:11], 0 offen offset:{64*ks}")
    k(f"""v_lshrrev_b32 v9, 2, v4
          v_lshlrev_b32 v10, 3, v5
          v_add_u32 v9, v9, v10
          v_mul_u32_u24 v9, 40, v9
          v_and_b32 v10, 3, v4
          v_lshlrev_b32 v10, 3, v10
          v_add_u32 v9, v9, v10
          s_mul_i32 s37, s36, {WVL}
          v_add_u32 v9, s37, v9
          s_waitcnt vmcnt(0)
          s_barrier""")
    WF = 16
    lab_v = "K1_VPATH"; lab_done = "K1_KVDONE"
    def kvloop(isV):
        def rd(ks):
            f = WF + 8*(ks % 3)
            for ct in range(2):
                o = ks*32*40 + ct*32
                k(f"ds_read_b64_tr_b16 v[{f+4*ct}:{f+4*ct+1}], v9 offset:{o}")
                k(f"ds_read_b64_tr_b16 v[{f+4*ct+2}:{f+4*ct+3}], v9 offset:{o+160}")
        rd(0); rd(1)
        for ks in range(20):
            if ks + 2 < 20: rd(ks + 2)
            k(f"s_waitcnt lgkmcnt({4*min(2, 19-ks)})")
            f = WF + 8*(ks % 3)
            for ct in range(2):
                acc = 40 + 4*ct
                c = "0" if ks == 0 else f"v[{acc}:{acc+3}]"
                w = f"v[{f+4*ct}:{f+4*ct+3}]"; x = f"v[{XF+4*ks}:{XF+4*ks+3}]"
                a, b = (x, w) if isV else (w, x)
                k(f"v_mfma_f32_16x16x32_bf16 v[{acc}:{acc+3}], {a}, {b}, {c}")
        k("s_nop 7\n s_nop 1")
    k(f"s_cmp_eq_u32 s36, 1\n s_cbranch_scc1 {lab_v}")
    kvloop(False)
    k(f"""v_cvt_pk_bf16_f32 v48, v40, v41
          v_cvt_pk_bf16_f32 v49, v42, v43
          v_cvt_pk_bf16_f32 v50, v44, v45
          v_cvt_pk_bf16_f32 v51, v46, v47
          v_lshlrev_b32 v10, 5, v6
          v_lshlrev_b32 v11, 3, v5
          v_add_u32 v10, v10, v11
          v_lshlrev_b32 v11, 3, v6
          buffer_store_dwordx2 v[48:49], v10, s[52:55], 0 offen
          v_cmp_gt_u32 vcc, 16, v2
          s_and_saveexec_b64 s[38:39], vcc
          buffer_store_dwordx2 v[50:51], v11, s[56:59], 0 offen
          s_endpgm""")
    k.label(lab_v)
    kvloop(True)
    k(f"""v_cvt_pk_bf16_f32 v48, v40, v41
          v_cvt_pk_bf16_f32 v49, v42, v43
          v_cvt_pk_bf16_f32 v50, v44, v45
          v_cvt_pk_bf16_f32 v51, v46, v47
          v_and_b32 v10, 1, v5
          v_lshlrev_b32 v10, 3, v10
          v_lshrrev_b32 v11, 1, v5
          v_lshlrev_b32 v11, 2, v11
          v_add_u32 v10, v10, v11
          v_add_u32 v10, s39, v10
          v_lshlrev_b32 v10, 1, v10
          v_lshlrev_b32 v11, 12, v4
          v_add_u32 v10, v10, v11
          buffer_store_dwordx2 v[48:49], v10, s[60:63], 0 offen
          v_mov_b32 v12, 0x3f803f80
          v_cmp_eq_u32 vcc, 4, v4
          s_nop 1
          v_cndmask_b32 v50, v50, v12, vcc
          v_cndmask_b32 v51, v51, v12, vcc
          v_add_u32 v10, 0x10000, v10
          v_cmp_gt_u32 vcc, 5, v4
          s_and_saveexec_b64 s[38:39], vcc
          buffer_store_dwordx2 v[50:51], v10, s[60:63], 0 offen""")
    k.label(lab_done)
    k("s_endpgm")
    k.label("K1_PF")
    k(f"""s_load_dwordx2 s[4:5], s[0:1], {KOFF['w1']}
          s_waitcnt lgkmcnt(0)""")
    srd(k, 12, 4, 5, 2048*1536*2)
    k(f"""s_sub_u32 s28, s2, 512
          s_lshl_b32 s28, s28, 2
          s_add_u32 s28, s28, s3
          s_mul_i32 s28, s28, 24576
          v_lshlrev_b32 v3, 7, v2
          buffer_load_dword v4, v3, s[12:15], s28 offen
          s_add_u32 s28, s28, 8192
          buffer_load_dword v5, v3, s[12:15], s28 offen
          s_add_u32 s28, s28, 8192
          buffer_load_dword v6, v3, s[12:15], s28 offen
          s_waitcnt vmcnt(0)""")
    k.label("K1_END")
    k("s_endpgm")
    return k.text(), dict(vgpr=144, sgpr=80, lds=53248, grid=576, block=256)

def kernel_wrap(label, body, meta):
    v = meta['vgpr']
    s = f""".globl {label}
.p2align 8
.type {label},@function
{label}:
{body}"""
    kd = f""".p2align 6
.amdhsa_kernel {label}
  .amdhsa_next_free_vgpr {v}
  .amdhsa_next_free_sgpr {meta['sgpr']}
  .amdhsa_accum_offset {(v+3)//4*4}
  .amdhsa_group_segment_fixed_size 0
  .amdhsa_kernarg_size 112
  .amdhsa_user_sgpr_count 2
  .amdhsa_user_sgpr_kernarg_segment_ptr 1
  .amdhsa_system_sgpr_workgroup_id_x 1
.end_amdhsa_kernel
"""
    return s, kd

def main():
    ks = []
    ks.append(("k1_kernel",) + gen_k1())
    import gen2
    if hasattr(gen2, "gen_k2"):
        ks.append(("k2_kernel",) + gen2.gen_k2(0))
    import gen3
    ks.append(("k3_kernel",) + gen3.gen_k3())
    head = open(f"cdna_kernels/{NAME}.s.ref").read().split("; Override launch")[0]
    out = head
    for label, body, meta in ks:
        out += f"; @launch kernel={label} grid=({meta['grid']},1,1) block=({meta['block']},1,1) lds={meta['lds']}\n"
    out += '.amdgcn_target "amdgcn-amd-amdhsa--gfx950"\n.text\n'
    kds = ""
    for label, body, meta in ks:
        s, kd = kernel_wrap(label, body, meta)
        out += s; kds += kd
    out += '.section .rodata,"a"\n' + kds
    open(f"cdna_kernels/{NAME}.s", "w").write(out)

if __name__ == "__main__":
    main()
```

```python
from gen import *
import layout as L
from gen2 import VM
import os
STAMP = os.environ.get('STAMP')

KS = 128
TA, TB = 20480, 16384
STG = TA + TB

def gemm80(k, T, mode, NS):
    k(f"""s_and_b32 s60, s2, 7
          s_lshr_b32 s61, s2, 3
          s_lshr_b32 s28, s61, 2
          s_and_b32 s29, s61, 3
          s_and_b32 s34, s60, 3
          s_lshl_b32 s34, s34, 3
          s_add_u32 s28, s28, s34
          s_lshr_b32 s34, s60, 2
          s_lshl_b32 s34, s34, 2
          s_add_u32 s29, s29, s34
          s_mov_b32 s30, 1280
          s_mov_b32 s56, 3072
          s_mov_b32 s57, 4096
          v_and_b32 v4, 15, v2
          v_lshrrev_b32 v5, 4, v2
          s_cmp_ge_u32 s3, 4
          s_cbranch_scc1 {T}_LD""")
    NA = 5; NB = 12 if mode == 'k3' else 0
    steps = [("B", t) for t in range(NB)] + [("A", t) for t in range(NA)]
    n = len(steps)
    k(f"""v_lshrrev_b32 v10, 1, v5
          v_lshlrev_b32 v10, 4, v10
          v_and_b32 v11, 1, v5
          v_lshlrev_b32 v11, 2, v11
          v_add_u32 v10, v10, v11
          v_lshrrev_b32 v11, 2, v4
          v_add_u32 v10, v10, v11
          v_mul_u32_u24 v10, 160, v10
          v_and_b32 v11, 3, v4
          v_lshlrev_b32 v11, 3, v11
          v_add_u32 v6, v10, v11
          v_xor_b32 v10, v5, v4
          v_lshlrev_b32 v10, 4, v10
          v_lshlrev_b32 v11, 8, v4
          v_add_u32 v7, v10, v11
          s_lshl_b32 s65, s3, 12
          v_add_u32 v8, s65, v7
          v_and_b32 v10, 3, v4
          v_lshlrev_b32 v10, 3, v10
          s_lshl_b32 s34, s3, 5
          v_add_u32 v10, s34, v10
          v_lshrrev_b32 v11, 3, v4
          v_lshlrev_b32 v11, 6, v11
          v_xor_b32 v10, v10, v11
          v_and_b32 v11, 1, v5
          v_lshlrev_b32 v11, 5, v11
          v_xor_b32 v10, v10, v11
          v_lshlrev_b32 v11, 3, v5
          v_lshrrev_b32 v12, 2, v4
          v_add_u32 v11, v11, v12
          v_lshlrev_b32 v11, 7, v11
          v_add_u32 v9, v10, v11""")
    k(f"""s_lshl_b32 s34, s28, 6
          s_lshl_b32 s39, s3, 4
          s_add_u32 s34, s34, s39
          v_add_u32 v10, s34, v4""")
    if mode == 'k3':
        k(f"""v_lshlrev_b32 v11, 2, v10
              v_lshlrev_b32 v12, 1, v10
              buffer_load_dword v80, v11, s[48:51], 0 offen
              buffer_load_ushort v81, v12, s[44:47], 0 offen""")
    k(f"""v_mul_lo_u32 v10, v10, s30
          v_lshlrev_b32 v11, 3, v5
          v_add_u32 v10, v10, v11
          s_mul_i32 s34, s29, 160
          v_add_u32 v82, s34, v10""")
    AA, AB = 16, 36
    FA, FB = 84, 124
    for i in range(n):
        part, t = steps[i]
        if STAMP and mode == 'k3':
            k(f"s_memtime s[66:67]\n s_waitcnt lgkmcnt(0)\n v_writelane_b32 v133, s66, {3*i}\n v_writelane_b32 v133, s66, {3*i+1}")
            k("s_barrier")
            k(f"s_memtime s[66:67]\n s_waitcnt lgkmcnt(0)\n v_writelane_b32 v133, s66, {3*i+2}")
        else:
            k("s_barrier")
        b = (i % NS) * STG
        ra0, rb0 = ((6, 8) if part == "A" else (7, 9))
        k(f"v_add_u32 v76, {b}, v{ra0}\n v_add_u32 v77, {b}, v{rb0}")
        ra, rb_ = 76, 77
        acc = AA if part == "A" else AB
        cnt = []
        def rd(kk):
            fa = FA + 20*(kk % 2); fb = FB + 4*(kk % 2)
            c = 0
            if part == "A":
                if kk: k(f"v_xor_b32 v15, {kk*64}, v{rb_}")
                k(f"ds_read_b128 v[{fb}:{fb+3}], v{15 if kk else rb_} offset:{TA}"); c += 1
                for mt in range(5):
                    for rdi in range(2):
                        k(f"ds_read_b64_tr_b16 v[{fa+4*mt+2*rdi}:{fa+4*mt+2*rdi+1}], v{ra} offset:{(32*kk + 8*rdi)*160 + mt*32}"); c += 1
            else:
                for rdi in range(2):
                    k(f"ds_read_b64_tr_b16 v[{fb+2*rdi}:{fb+2*rdi+1}], v{rb_} offset:{TA + (32*kk + 4*rdi)*128}"); c += 1
                if kk: k(f"v_xor_b32 v15, {kk*64}, v{ra}")
                for mt in range(5):
                    k(f"ds_read_b128 v[{fa+4*mt}:{fa+4*mt+3}], v{15 if kk else ra} offset:{mt*4096}"); c += 1
            cnt.append(c)
        rd(0)
        for kk in range(4):
            if kk + 1 < 4: rd(kk + 1)
            k(f"s_waitcnt lgkmcnt({sum(cnt[kk+1:])})")
            fa = FA + 20*(kk % 2); fb = FB + 4*(kk % 2)
            for mt in range(5):
                a = acc + 4*mt
                c = "0" if (t == 0 and kk == 0) else f"v[{a}:{a+3}]"
                k(f"v_mfma_f32_16x16x32_bf16 v[{a}:{a+3}], v[{fa+4*mt}:{fa+4*mt+3}], v[{fb}:{fb+3}], {c}")
    if mode == 'k3':
        k(f"""s_waitcnt vmcnt(0)
              v_lshlrev_b32 v81, 16, v81
              v_sub_f32 v83, 1.0, v80
              v_cvt_pk_bf16_f32 v83, v83, v83
              v_and_b32 v83, 0xffff0000, v83
              s_nop 7""")
        for mt in range(5):
            for h2 in range(2):
                a = AA + 4*mt + 2*h2; b = AB + 4*mt + 2*h2
                k(f"""v_cvt_pk_bf16_f32 v56, v{a}, v{a+1}
                      v_cvt_pk_bf16_f32 v57, v{b}, v{b+1}
                      v_lshlrev_b32 v58, 16, v56
                      v_and_b32 v56, 0xffff0000, v56
                      v_lshlrev_b32 v59, 16, v57
                      v_and_b32 v57, 0xffff0000, v57
                      v_add_f32 v59, v59, v81
                      v_add_f32 v57, v57, v81
                      v_cvt_pk_bf16_f32 v57, v59, v57
                      v_lshlrev_b32 v59, 16, v57
                      v_and_b32 v57, 0xffff0000, v57
                      v_mul_f32 v58, v58, v80
                      v_mul_f32 v56, v56, v80
                      v_mul_f32 v59, v59, v83
                      v_mul_f32 v57, v57, v83
                      v_cvt_pk_bf16_f32 v56, v58, v56
                      v_cvt_pk_bf16_f32 v57, v59, v57
                      v_lshlrev_b32 v58, 16, v56
                      v_and_b32 v56, 0xffff0000, v56
                      v_lshlrev_b32 v59, 16, v57
                      v_and_b32 v57, 0xffff0000, v57
                      v_add_f32 v58, v58, v59
                      v_add_f32 v56, v56, v57
                      v_cvt_pk_bf16_f32 v{84+2*mt+h2}, v58, v56""")
    else:
        k("s_mov_b32 s34, 0x3ea52b5c\n s_nop 7\n s_nop 1")
        for j in range(20):
            k(f"v_mul_f32 v{AA+j}, s34, v{AA+j}")
        for mt in range(5):
            for h2 in range(2):
                a = AA + 4*mt + 2*h2
                k(f"v_cvt_pk_bf16_f32 v{84+2*mt+h2}, v{a}, v{a+1}")
    for mt in range(5):
        k(f"buffer_store_dwordx2 v[{84+2*mt}:{85+2*mt}], v82, s[52:55], 0 offen offset:{32*mt}")
    if STAMP and mode == 'k3':
        srd_off(k, 68, 20, 21, L.END + 3*(1<<20), 1<<20)
        k(f"""s_lshl_b32 s34, s2, 3
              s_add_u32 s34, s34, s3
              s_add_u32 s34, s34, 0
              s_lshl_b32 s34, s34, 8
              v_lshlrev_b32 v10, 2, v2
              buffer_store_dword v133, v10, s[68:71], s34 offen""")
    k("s_endpgm")
    k.label(f"{T}_LD")
    k("s_sub_u32 s3, s3, 4")
    for j in range(5):
        d = 60 + j
        k(f"""v_add_u32 v10, {64*j}, v2
              v_mul_u32_u24 v11, 0x199a, v10
              v_lshrrev_b32 v11, 16, v11
              v_mul_u32_u24 v12, 10, v11
              v_sub_u32 v12, v10, v12
              v_and_b32 v13, 0x13, v11
              v_and_b32 v14, 4, v11
              v_lshlrev_b32 v14, 1, v14
              v_or_b32 v13, v13, v14
              v_and_b32 v14, 8, v11
              v_lshrrev_b32 v14, 1, v14
              v_or_b32 v13, v13, v14
              v_mul_lo_u32 v13, v13, s30
              v_lshlrev_b32 v12, 4, v12
              v_add_u32 v{d}, v13, v12""")
    k("s_mul_i32 s35, s3, 20")
    dir_voff128(k, [70, 71, 72, 73], 2, 30, 10, 11)
    if mode == 'k3':
        for j in range(5):
            d = 65 + j
            k(f"""v_add_u32 v10, {4*j}, v5
                  v_add_u32 v11, s35, v10
                  v_and_b32 v11, 15, v11
                  v_xor_b32 v11, v11, v4
                  v_lshlrev_b32 v11, 4, v11
                  v_mul_lo_u32 v10, v10, s56
                  v_add_u32 v{d}, v10, v11""")
        for par in range(2):
            d = 74 + par
            k(f"""v_lshrrev_b32 v10, 3, v2
                  v_mul_lo_u32 v10, v10, s57
                  v_lshrrev_b32 v11, 4, v2
                  v_and_b32 v11, 1, v11
                  v_lshlrev_b32 v11, 2, v11
                  v_and_b32 v12, 7, v2
                  v_xor_b32 v12, v12, v11
                  v_xor_b32 v12, {2*par}, v12
                  v_lshlrev_b32 v12, 4, v12
                  v_add_u32 v{d}, v12, v10""")
    k(f"""s_mul_i32 s58, s3, {32*1280}
          s_mul_i32 s34, s29, 160
          s_add_u32 s58, s58, s34
          s_mul_i32 s59, s29, 80
          s_add_u32 s59, s59, s35
          s_mul_i32 s59, s59, 3072
          s_lshl_b32 s62, s28, 6
          s_lshl_b32 s34, s3, 4
          s_add_u32 s62, s62, s34
          s_mul_i32 s62, s62, 1280
          s_lshl_b32 s63, s3, 17
          s_lshl_b32 s34, s28, 7
          s_add_u32 s63, s63, s34
          s_mul_i32 s64, s3, 5120
          s_lshl_b32 s65, s3, 12""")
    vm = VM()
    def issue(i):
        part, t = steps[i]
        b = (i % NS) * STG
        if part == "A":
            for j in range(5):
                k(f"""s_add_u32 m0, s64, {b + j*1024}
                      s_add_u32 s34, s58, {t*KS*1280}
                      buffer_load_dwordx4 v{60+j}, s[8:11], s34 offen lds""")
            for j in range(4):
                k(f"""s_add_u32 m0, s65, {b + TA + j*1024}
                      s_add_u32 s34, s62, {4*j*1280 + t*KS*2}
                      buffer_load_dwordx4 v{70+j}, s[12:15], s34 offen lds""")
        else:
            for j in range(5):
                k(f"""s_add_u32 m0, s64, {b + j*1024}
                      s_add_u32 s34, s59, {t*KS*2}
                      buffer_load_dwordx4 v{65+j}, s[16:19], s34 offen lds""")
            for j in range(4):
                k(f"""s_add_u32 m0, s65, {b + TA + j*1024}
                      s_add_u32 s34, s63, {(t*KS + 8*j)*4096}
                      buffer_load_dwordx4 v{74+(j%2)}, s[40:43], s34 offen lds""")
        vm.add(i, 9)
    for i in range(min(NS - 1, n)): issue(i)
    for i in range(n):
        if STAMP and mode == 'k3':
            k(f"s_memtime s[66:67]\n s_waitcnt lgkmcnt(0)\n v_writelane_b32 v133, s66, {3*i}")
            k(f"s_waitcnt vmcnt({vm.wait_for([i])})")
            k(f"s_memtime s[66:67]\n s_waitcnt lgkmcnt(0)\n v_writelane_b32 v133, s66, {3*i+1}")
            k("s_barrier")
            k(f"s_memtime s[66:67]\n s_waitcnt lgkmcnt(0)\n v_writelane_b32 v133, s66, {3*i+2}")
        else:
            k(f"s_waitcnt vmcnt({vm.wait_for([i])})\n s_barrier")
        if i + NS - 1 < n: issue(i + NS - 1)
    if STAMP and mode == 'k3':
        srd_off(k, 68, 20, 21, L.END + 3*(1<<20), 1<<20)
        k(f"""s_lshl_b32 s34, s2, 3
              s_add_u32 s34, s34, s3
              s_add_u32 s34, s34, 4
              s_lshl_b32 s34, s34, 8
              v_lshlrev_b32 v10, 2, v2
              buffer_store_dword v133, v10, s[68:71], s34 offen""")
    k("s_endpgm")

def ticket(k, T, quota, ldsoff):
    k(f"""s_load_dwordx2 s[76:77], s[0:1], {KOFF['dbg']}
          s_getreg_b32 s70, hwreg(HW_REG_XCC_ID, 0, 4)
          s_and_b32 s70, s70, 7
          s_waitcnt lgkmcnt(0)""")
    srd(k, 72, 76, 77, 256)
    k(f"""v_mov_b32 v11, {ldsoff}
          s_cmp_lg_u32 s3, 0
          s_cbranch_scc1 {T}_TKW
          s_mov_b32 s71, 0
          s_mov_b64 exec, 1""")
    k.label(f"{T}_TKT")
    k(f"""v_mov_b32 v10, 1
          s_lshl_b32 s76, s70, 2
          v_mov_b32 v12, s76
          buffer_atomic_add v10, v12, s[72:75], 0 offen sc0 sc1
          s_waitcnt vmcnt(0)
          v_readfirstlane_b32 s76, v10
          s_nop 3
          s_cmp_lt_u32 s76, {quota}
          s_cbranch_scc1 {T}_TKF
          s_add_u32 s70, s70, 1
          s_and_b32 s70, s70, 7
          s_add_u32 s71, s71, 1
          s_cmp_lt_u32 s71, 8
          s_cbranch_scc1 {T}_TKT
          s_mov_b32 s76, 0x1000""")
    k.label(f"{T}_TKF")
    k(f"""s_lshl_b32 s76, s76, 3
          s_or_b32 s76, s76, s70
          v_mov_b32 v10, s76
          ds_write_b32 v11, v10
          s_waitcnt lgkmcnt(0)
          s_mov_b64 exec, -1""")
    k.label(f"{T}_TKW")
    k(f"""s_barrier
          ds_read_b32 v10, v11
          s_waitcnt lgkmcnt(0)
          v_readfirstlane_b32 s2, v10
          s_nop 3
          s_cmp_ge_u32 s2, {quota*8}
          s_cbranch_scc1 {k.endl}""")

def gen_k3():
    k = K(); k.endl = "K3_END"
    prologue(k, 256)
    k(f"""s_load_dwordx2 s[20:21], s[0:1], {KOFF['ws']}
          s_load_dwordx2 s[4:5], s[0:1], {KOFF['wo']}
          s_load_dwordx2 s[6:7], s[0:1], {KOFF['w2']}
          s_load_dwordx2 s[22:23], s[0:1], {KOFF['b2']}
          s_load_dwordx2 s[24:25], s[0:1], {KOFF['out']}
          s_waitcnt lgkmcnt(0)""")
    srd(k, 8, 4, 5, 640*640*2)
    srd_off(k, 12, 20, 21, L.O, 2048*640*2)
    srd_off(k, 16, 20, 21, L.U, 640*1536*2)
    srd(k, 40, 6, 7, 1536*2048*2)
    srd(k, 44, 22, 23, 2048*2)
    srd_off(k, 48, 20, 21, L.G, 2048*4)
    srd(k, 52, 24, 25, 2048*640*2)
    NS = 4
    pass
    gemm80(k, "K3", 'k3', NS)
    k.label("K3_END")
    k("s_endpgm")
    return k.text(), dict(vgpr=136, sgpr=80, lds=NS*STG + 64, grid=256, block=512)
```

```python
import sys
import layout as L
NAME = "gated_mix__grouped_kv_mqa__mixer_token_mlp__prompt"

class K:
    def __init__(self):
        self.L = []
        self.uid = 0
    def __call__(self, s):
        for line in s.strip("\n").split("\n"):
            self.L.append("    " + line.strip())
    def label(self, n):
        self.L.append(n + ":")
    def new(self, p):
        self.uid += 1
        return f"{p}_{self.uid}"
    def text(self):
        return "\n".join(self.L) + "\n"

def srd(k, d, lo, hi, size):
    k(f"""s_mov_b32 s{d}, s{lo}
          s_and_b32 s{d+1}, s{hi}, 0xffff
          s_mov_b32 s{d+2}, {size}
          s_mov_b32 s{d+3}, 0x00020000""")

def srd_off(k, d, lo, hi, off, size):
    k(f"""s_add_u32 s{d}, s{lo}, {off}
          s_addc_u32 s{d+1}, s{hi}, 0
          s_and_b32 s{d+1}, s{d+1}, 0xffff
          s_mov_b32 s{d+2}, {size}
          s_mov_b32 s{d+3}, 0x00020000""")

KOFF = dict(x=0, wq=8, wk=16, wv=24, wo=32, bx=40, w1=48, b1=56, w2=64, b2=72, gw=80, out=88, dbg=96, ws=104)

class Opnd:
    def __init__(self, typ, srd, pitch, voff, sbase, rd):
        self.typ = typ
        self.srd = srd
        self.pitch = pitch
        self.voff = voff
        self.sbase = sbase
        self.rd = rd

def dma_tile(k, op, KS, k0, ldsoff, s_wlds, s_tmp):
    ipw = (64 * KS * 2 // 1024) // 4
    for ii in range(ipw):
        if op.typ == 'tr':
            g = (k0 + 8 * ii) * op.pitch
            v = op.voff[0]
        else:
            rows_per = 1024 // (KS * 2)
            g = rows_per * ii * op.pitch + k0 * 2
            v = op.voff[ii % len(op.voff)]
        k(f"s_add_u32 m0, s{s_wlds}, {ldsoff + ii * 1024}")
        k(f"s_add_u32 s{s_tmp}, s{op.sbase}, {g}")
        k(f"buffer_load_dwordx4 v{v}, s[{op.srd}:{op.srd+3}], s{s_tmp} offen lds")

def frag_read(k, op, KS, kk, ldsoff, dst, vtmp):
    if op.typ == 'tr':
        k(f"ds_read_b64_tr_b16 v[{dst}:{dst+1}], v{op.rd} offset:{ldsoff + (16*kk)*128}")
        k(f"ds_read_b64_tr_b16 v[{dst+2}:{dst+3}], v{op.rd} offset:{ldsoff + (16*kk+4)*128}")
        return 2
    else:
        if kk == 0:
            k(f"ds_read_b128 v[{dst}:{dst+3}], v{op.rd} offset:{ldsoff}")
        else:
            k(f"v_xor_b32 v{vtmp}, {kk*32}, v{op.rd}")
            k(f"ds_read_b128 v[{dst}:{dst+3}], v{vtmp} offset:{ldsoff}")
        return 1

def gemm_ring(k, steps, KS, NS, lds0, s_wlds, s_tmp, fragM, fragN, vtmp, extra_vm=0, pre_issued=False, barrier_hook=None):
    TS = 64 * KS * 2
    ipw = (TS // 1024) // 4
    D = 2 * ipw
    n = len(steps)
    def issue(t):
        opM, opN, k0M, k0N, acc, first = steps[t]
        b = lds0 + (t % NS) * 2 * TS
        dma_tile(k, opM, KS, k0M, b, s_wlds, s_tmp)
        dma_tile(k, opN, KS, k0N, b + TS, s_wlds, s_tmp)
    if not pre_issued:
        for t in range(min(NS - 1, n)):
            issue(t)
    nk = KS // 16
    for t in range(n):
        opM, opN, k0M, k0N, acc, first = steps[t]
        inflight_after = min(n - 1, t + NS - 2) - t
        k(f"s_waitcnt vmcnt({inflight_after * D})")
        k("s_barrier")
        if t + NS - 1 < n:
            issue(t + NS - 1)
        b = lds0 + (t % NS) * 2 * TS
        cnt = []
        def rd(kk):
            c = frag_read(k, opM, KS, kk, b, fragM + 4 * (kk % 3), vtmp)
            c += frag_read(k, opN, KS, kk, b + TS, fragN + 4 * (kk % 3), vtmp + 1)
            cnt.append(c)
        rd(0); rd(1)
        for kk in range(nk):
            if kk + 2 < nk:
                rd(kk + 2)
            pend = sum(cnt[kk + 1:])
            k(f"s_waitcnt lgkmcnt({pend})")
            a = fragM + 4 * (kk % 3); bb = fragN + 4 * (kk % 3)
            c = "0" if (first and kk == 0) else f"v[{acc}:{acc+15}]"
            k(f"v_mfma_f32_32x32x16_bf16 v[{acc}:{acc+15}], v[{a}:{a+3}], v[{bb}:{bb+3}], {c}")

def lane_setup_gemm(k, KS, vl, vt, tr_voff, dir_voff, tr_rd, dir_rd, wm_s=None):
    pass

def tr_voff(k, dst, vl, pitch_s, t0, t1):
    k(f"""v_lshrrev_b32 v{t0}, 3, v{vl}
          v_mul_lo_u32 v{t0}, v{t0}, s{pitch_s}
          v_lshrrev_b32 v{t1}, 4, v{vl}
          v_and_b32 v{t1}, 1, v{t1}
          v_lshlrev_b32 v{t1}, 2, v{t1}
          v_and_b32 v{dst}, 7, v{vl}
          v_xor_b32 v{dst}, v{dst}, v{t1}
          v_lshlrev_b32 v{dst}, 4, v{dst}
          v_add_u32 v{dst}, v{dst}, v{t0}""")

def dir_voff64(k, dsts, vl, pitch_s, t0, t1):
    for par, dst in enumerate(dsts):
        k(f"""v_lshrrev_b32 v{t0}, 3, v{vl}
              v_mul_lo_u32 v{t0}, v{t0}, s{pitch_s}
              v_lshrrev_b32 v{t1}, 4, v{vl}
              v_add_u32 v{t1}, {4*par}, v{t1}
              v_and_b32 v{dst}, 7, v{vl}
              v_xor_b32 v{dst}, v{dst}, v{t1}
              v_lshlrev_b32 v{dst}, 4, v{dst}
              v_add_u32 v{dst}, v{dst}, v{t0}""")

def dir_voff128(k, dsts, vl, pitch_s, t0, t1):
    for par, dst in enumerate(dsts):
        k(f"""v_lshrrev_b32 v{t0}, 4, v{vl}
              v_add_u32 v{t1}, {4*par}, v{t0}
              v_mul_lo_u32 v{t0}, v{t0}, s{pitch_s}
              v_and_b32 v{dst}, 15, v{vl}
              v_xor_b32 v{dst}, v{dst}, v{t1}
              v_lshlrev_b32 v{dst}, 4, v{dst}
              v_add_u32 v{dst}, v{dst}, v{t0}""")

def tr_rd(k, dst, vl, half_s, t0, t1):
    k(f"""v_and_b32 v{t0}, 3, v{vl}
          v_lshlrev_b32 v{t0}, 3, v{t0}
          v_lshrrev_b32 v{t1}, 4, v{vl}
          v_and_b32 v{t1}, 1, v{t1}
          v_lshlrev_b32 v{t1}, 5, v{t1}
          v_add_u32 v{t0}, v{t0}, v{t1}
          s_lshl_b32 s{half_s}, s{half_s}, 6
          v_add_u32 v{t0}, s{half_s}, v{t0}
          v_lshrrev_b32 v{t1}, 3, v{vl}
          v_and_b32 v{t1}, 1, v{t1}
          v_lshlrev_b32 v{t1}, 6, v{t1}
          v_xor_b32 v{t0}, v{t0}, v{t1}
          v_lshrrev_b32 v{t1}, 2, v{vl}
          v_and_b32 v{t1}, 3, v{t1}
          v_lshlrev_b32 v{t1}, 7, v{t1}
          v_add_u32 v{t0}, v{t0}, v{t1}
          v_lshrrev_b32 v{t1}, 5, v{vl}
          v_lshlrev_b32 v{t1}, 10, v{t1}
          v_add_u32 v{dst}, v{t0}, v{t1}""")

def dir_rd(k, dst, vl, half_s, KS, t0, t1):
    rb = KS * 2
    sh = {128: 7, 256: 8}[rb]
    k(f"""v_and_b32 v{t0}, 31, v{vl}
          s_lshl_b32 s{half_s}, s{half_s}, 5
          v_add_u32 v{t0}, s{half_s}, v{t0}""")
    if KS == 64:
        k(f"""v_lshrrev_b32 v{t1}, 1, v{t0}
              v_and_b32 v{t1}, 7, v{t1}""")
    else:
        k(f"v_and_b32 v{t1}, 15, v{t0}")
    k(f"""v_lshrrev_b32 v{dst}, 5, v{vl}
          v_xor_b32 v{dst}, v{dst}, v{t1}
          v_lshlrev_b32 v{dst}, 4, v{dst}
          v_lshlrev_b32 v{t0}, {sh}, v{t0}
          v_add_u32 v{dst}, v{dst}, v{t0}""")

def prologue(k, nwg):
    k(f"""s_cmp_ge_u32 s2, {nwg}
          s_cbranch_scc1 {k.endl}
          v_lshrrev_b32 v1, 6, v0
          v_and_b32 v2, 63, v0
          s_nop 0
          v_readfirstlane_b32 s3, v1""")

def gen_k1():
    k = K(); k.endl = "K1_END"
    prologue(k, 576)
    k(f"""s_load_dwordx2 s[4:5], s[0:1], {KOFF['x']}
          s_load_dwordx2 s[6:7], s[0:1], {KOFF['wq']}
          s_load_dwordx2 s[20:21], s[0:1], {KOFF['ws']}
          s_load_dwordx2 s[22:23], s[0:1], {KOFF['wk']}
          s_load_dwordx2 s[24:25], s[0:1], {KOFF['wv']}
          s_load_dwordx2 s[26:27], s[0:1], {KOFF['gw']}
          s_waitcnt lgkmcnt(0)""")
    srd(k, 8, 4, 5, 2048*640*2)
    k("""s_cmp_ge_u32 s2, 320
         s_cbranch_scc1 K1_ROWS""")
    srd(k, 12, 6, 7, 640*640*2)
    srd_off(k, 16, 20, 21, L.Q, 2048*640*2)
    KS, NS = 64, 3
    k("""s_and_b32 s60, s2, 7
         s_lshr_b32 s61, s2, 3
         s_mul_hi_u32 s28, s61, 0x33333334
         s_mul_i32 s29, s28, 5
         s_sub_u32 s29, s61, s29
         s_and_b32 s34, s60, 3
         s_lshl_b32 s34, s34, 3
         s_add_u32 s28, s28, s34
         s_lshr_b32 s34, s60, 2
         s_mul_i32 s34, s34, 5
         s_add_u32 s29, s29, s34
         s_mov_b32 s30, 1280""")
    ipw = 2
    k(f"""s_mul_i32 s31, s3, {ipw*8*1280}
          s_lshl_b32 s34, s29, 7
          s_add_u32 s31, s31, s34
          s_lshl_b32 s32, s28, 6
          s_mul_i32 s34, s3, {ipw*8}
          s_add_u32 s32, s32, s34
          s_mul_i32 s32, s32, 1280
          s_lshl_b32 s33, s3, {10+1}
          s_and_b32 s35, s3, 1
          s_lshr_b32 s36, s3, 1""")
    k("s_mov_b32 s37, s35\n s_mov_b32 s38, s36")
    tr_voff(k, 3, 2, 30, 10, 11)
    dir_voff64(k, [4, 5], 2, 30, 10, 11)
    tr_rd(k, 6, 2, 37, 10, 11)
    dir_rd(k, 7, 2, 38, KS, 10, 11)
    opM = Opnd('tr', 12, 1280, [3], 31, 6)
    opN = Opnd('dir', 8, 1280, [4, 5], 32, 7)
    ACC = 16
    steps = [(opM, opN, t*KS, t*KS, ACC, t == 0) for t in range(640 // KS)]
    gemm_ring(k, steps, KS, NS, 0, 33, 34, 32, 44, 12)
    k(f"""v_and_b32 v10, 31, v2
          s_lshl_b32 s34, s28, 6
          s_lshl_b32 s39, s36, 5
          s_add_u32 s34, s34, s39
          v_add_u32 v10, s34, v10
          v_mul_lo_u32 v10, v10, s30
          v_lshrrev_b32 v11, 5, v2
          v_lshlrev_b32 v11, 3, v11
          v_add_u32 v10, v10, v11
          s_lshl_b32 s34, s29, 7
          s_lshl_b32 s39, s35, 6
          s_add_u32 s34, s34, s39
          v_add_u32 v10, s34, v10
          s_nop 7
          s_nop 3""")
    k("s_mov_b32 s34, 0x3ea52b5c")
    for j in range(16):
        k(f"v_mul_f32 v{ACC+j}, s34, v{ACC+j}")
    for j in range(4):
        a = ACC + 4*j
        k(f"""v_cvt_pk_bf16_f32 v{56+2*j}, v{a}, v{a+1}
              v_cvt_pk_bf16_f32 v{57+2*j}, v{a+2}, v{a+3}""")
    for j in range(4):
        k(f"buffer_store_dwordx2 v[{56+2*j}:{57+2*j}], v10, s[16:19], 0 offen offset:{16*j}")
    k("s_endpgm")
    k.label("K1_ROWS")
    k("s_mov_b32 s30, 1280\n s_cmp_ge_u32 s2, 448\n s_cbranch_scc1 K1_KV")
    k("s_sub_u32 s28, s2, 320")
    srd(k, 40, 26, 27, 640*2)
    srd_off(k, 44, 20, 21, L.H, 2048*640*2)
    srd_off(k, 48, 20, 21, L.G, 2048*4)
    k(f"""v_lshrrev_b32 v4, 4, v0
          v_and_b32 v5, 15, v0
          s_lshl_b32 s34, s28, 4
          v_add_u32 v6, s34, v4
          v_mul_lo_u32 v7, v6, s30
          v_lshlrev_b32 v8, 4, v5
          v_add_u32 v7, v7, v8""")
    NP = 20
    X0 = 24; GW0 = 44; XF = 64
    for i in range(5):
        k(f"buffer_load_dwordx4 v[{X0+4*i}:{X0+4*i+3}], v7, s[8:11], 0 offen offset:{256*i}")
    for i in range(5):
        k(f"buffer_load_dwordx4 v[{GW0+4*i}:{GW0+4*i+3}], v8, s[40:43], 0 offen offset:{256*i}")
    k("s_waitcnt vmcnt(5)\n v_mov_b32 v10, 0\n v_mov_b32 v11, 0")
    for i in range(NP):
        k(f"""v_lshlrev_b32 v{XF+2*i}, 16, v{X0+i}
              v_and_b32 v{XF+2*i+1}, 0xffff0000, v{X0+i}
              v_add_f32 v10, v10, v{XF+2*i}
              v_add_f32 v10, v10, v{XF+2*i+1}""")
    def red16(r, t):
        for m in (0x041F, 0x081F, 0x101F, 0x201F):
            k(f"""ds_swizzle_b32 v{t}, v{r} offset:{m}
                  s_waitcnt lgkmcnt(0)
                  v_add_f32 v{r}, v{r}, v{t}""")
    red16(10, 12)
    k(f"""s_mov_b32 s34, 0x3acccccd
          v_mul_f32 v10, s34, v10
          v_mov_b32 v16, 0""")
    for i in range(2*NP):
        k(f"""v_sub_f32 v12, v{XF+i}, v10
              v_fmac_f32 v16, v12, v12""")
    red16(16, 12)
    k("s_waitcnt vmcnt(0)")
    for i in range(NP):
        gr = GW0 + i
        k(f"""v_lshlrev_b32 v14, 16, v{gr}
              v_and_b32 v15, 0xffff0000, v{gr}
              v_mul_f32 v14, v{XF+2*i}, v14
              v_mul_f32 v15, v{XF+2*i+1}, v15
              v_cvt_pk_bf16_f32 v14, v14, v15
              v_lshlrev_b32 v15, 16, v14
              v_and_b32 v14, 0xffff0000, v14
              v_add_f32 v11, v11, v15
              v_add_f32 v11, v11, v14""")
    red16(11, 12)
    k(f"""v_mul_f32 v16, s34, v16
          v_cvt_pk_bf16_f32 v17, v10, v16
          v_lshlrev_b32 v18, 16, v17
          v_and_b32 v19, 0xffff0000, v17
          v_add_f32 v19, 0x3727c5ac, v19
          v_cvt_pk_bf16_f32 v19, v19, v19
          v_and_b32 v19, 0xffff0000, v19
          v_sqrt_f32 v19, v19
          s_nop 0
          v_cvt_pk_bf16_f32 v19, v19, v19
          v_and_b32 v19, 0xffff0000, v19
          v_rcp_f32 v20, v19
          s_nop 0""")
    for i in range(NP):
        k(f"""v_sub_f32 v12, v{XF+2*i}, v18
              v_sub_f32 v13, v{XF+2*i+1}, v18
              v_cvt_pk_bf16_f32 v12, v12, v13
              v_and_b32 v13, 0xffff0000, v12
              v_lshlrev_b32 v12, 16, v12
              v_mul_f32 v14, v12, v20
              v_mul_f32 v15, v13, v20
              v_fma_f32 v12, -v14, v19, v12
              v_fma_f32 v13, -v15, v19, v13
              v_fma_f32 v14, v12, v20, v14
              v_fma_f32 v15, v13, v20, v15
              v_cvt_pk_bf16_f32 v{X0+i}, v14, v15""")
    for i in range(5):
        k(f"buffer_store_dwordx4 v[{X0+4*i}:{X0+4*i+3}], v7, s[44:47], 0 offen offset:{256*i}")
    k(f"""v_cvt_pk_bf16_f32 v11, v11, v11
          v_and_b32 v11, 0xffff0000, v11
          v_mul_f32 v11, 0xbfb8aa3b, v11
          v_exp_f32 v11, v11
          s_nop 0
          v_add_f32 v11, 1.0, v11
          v_rcp_f32 v11, v11
          s_nop 0
          v_cvt_pk_bf16_f32 v11, v11, v11
          v_and_b32 v11, 0xffff0000, v11
          v_lshlrev_b32 v12, 2, v6
          v_cmp_eq_u32 vcc, 0, v5
          s_and_saveexec_b64 s[36:37], vcc
          buffer_store_dword v11, v12, s[48:51], 0 offen
          s_endpgm""")
    k.label("K1_KV")
    k("s_cmp_ge_u32 s2, 512\n s_cbranch_scc1 K1_PF")
    k("s_sub_u32 s28, s2, 448")
    srd(k, 12, 22, 23, 640*20*2)
    srd(k, 16, 24, 25, 640*20*2)
    srd_off(k, 52, 20, 21, L.KA, 2048*32)
    srd_off(k, 56, 20, 21, L.KB, 2048*8)
    srd_off(k, 60, 20, 21, L.VT, 21*4096)
    WVL = 26112
    k(f"""s_and_b32 s35, s3, 1
          s_lshr_b32 s36, s3, 1
          v_and_b32 v4, 15, v2
          v_lshrrev_b32 v5, 4, v2
          s_lshl_b32 s34, s28, 5
          s_lshl_b32 s37, s35, 4
          s_add_u32 s39, s34, s37
          v_add_u32 v6, s39, v4
          v_mul_lo_u32 v7, v6, s30
          v_lshlrev_b32 v8, 4, v5
          v_add_u32 v7, v7, v8
          v_lshlrev_b32 v3, 4, v2""")
    for i in range(7):
        lab = k.new("K1_SK")
        if i == 6:
            k(f"s_cmp_ge_u32 s3, 1\n s_cbranch_scc1 {lab}")
        k(f"""s_lshl_b32 s34, s3, 10
              s_add_u32 s34, s34, {i*4096}
              s_mov_b32 m0, s34
              s_nop 0
              buffer_load_dwordx4 v3, s[12:15], s34 offen lds
              s_add_u32 s37, s34, {WVL}
              s_mov_b32 m0, s37
              s_nop 0
              buffer_load_dwordx4 v3, s[16:19], s34 offen lds""")
        if i == 6:
            k.label(lab)
    XF = 64
    for ks in range(20):
        k(f"buffer_load_dwordx4 v[{XF+4*ks}:{XF+4*ks+3}], v7, s[8:11], 0 offen offset:{64*ks}")
    k(f"""v_lshrrev_b32 v9, 2, v4
          v_lshlrev_b32 v10, 3, v5
          v_add_u32 v9, v9, v10
          v_mul_u32_u24 v9, 40, v9
          v_and_b32 v10, 3, v4
          v_lshlrev_b32 v10, 3, v10
          v_add_u32 v9, v9, v10
          s_mul_i32 s37, s36, {WVL}
          v_add_u32 v9, s37, v9
          s_waitcnt vmcnt(0)
          s_barrier""")
    WF = 16
    lab_v = "K1_VPATH"; lab_done = "K1_KVDONE"
    def kvloop(isV):
        def rd(ks):
            f = WF + 8*(ks % 3)
            for ct in range(2):
                o = ks*32*40 + ct*32
                k(f"ds_read_b64_tr_b16 v[{f+4*ct}:{f+4*ct+1}], v9 offset:{o}")
                k(f"ds_read_b64_tr_b16 v[{f+4*ct+2}:{f+4*ct+3}], v9 offset:{o+160}")
        rd(0); rd(1)
        for ks in range(20):
            if ks + 2 < 20: rd(ks + 2)
            k(f"s_waitcnt lgkmcnt({4*min(2, 19-ks)})")
            f = WF + 8*(ks % 3)
            for ct in range(2):
                acc = 40 + 4*ct
                c = "0" if ks == 0 else f"v[{acc}:{acc+3}]"
                w = f"v[{f+4*ct}:{f+4*ct+3}]"; x = f"v[{XF+4*ks}:{XF+4*ks+3}]"
                a, b = (x, w) if isV else (w, x)
                k(f"v_mfma_f32_16x16x32_bf16 v[{acc}:{acc+3}], {a}, {b}, {c}")
        k("s_nop 7\n s_nop 1")
    k(f"s_cmp_eq_u32 s36, 1\n s_cbranch_scc1 {lab_v}")
    kvloop(False)
    k(f"""v_cvt_pk_bf16_f32 v48, v40, v41
          v_cvt_pk_bf16_f32 v49, v42, v43
          v_cvt_pk_bf16_f32 v50, v44, v45
          v_cvt_pk_bf16_f32 v51, v46, v47
          v_lshlrev_b32 v10, 5, v6
          v_lshlrev_b32 v11, 3, v5
          v_add_u32 v10, v10, v11
          v_lshlrev_b32 v11, 3, v6
          buffer_store_dwordx2 v[48:49], v10, s[52:55], 0 offen
          v_cmp_gt_u32 vcc, 16, v2
          s_and_saveexec_b64 s[38:39], vcc
          buffer_store_dwordx2 v[50:51], v11, s[56:59], 0 offen
          s_endpgm""")
    k.label(lab_v)
    kvloop(True)
    k(f"""v_cvt_pk_bf16_f32 v48, v40, v41
          v_cvt_pk_bf16_f32 v49, v42, v43
          v_cvt_pk_bf16_f32 v50, v44, v45
          v_cvt_pk_bf16_f32 v51, v46, v47
          v_and_b32 v10, 1, v5
          v_lshlrev_b32 v10, 3, v10
          v_lshrrev_b32 v11, 1, v5
          v_lshlrev_b32 v11, 2, v11
          v_add_u32 v10, v10, v11
          v_add_u32 v10, s39, v10
          v_lshlrev_b32 v10, 1, v10
          v_lshlrev_b32 v11, 12, v4
          v_add_u32 v10, v10, v11
          buffer_store_dwordx2 v[48:49], v10, s[60:63], 0 offen
          v_mov_b32 v12, 0x3f803f80
          v_cmp_eq_u32 vcc, 4, v4
          s_nop 1
          v_cndmask_b32 v50, v50, v12, vcc
          v_cndmask_b32 v51, v51, v12, vcc
          v_add_u32 v10, 0x10000, v10
          v_cmp_gt_u32 vcc, 5, v4
          s_and_saveexec_b64 s[38:39], vcc
          buffer_store_dwordx2 v[50:51], v10, s[60:63], 0 offen""")
    k.label(lab_done)
    k("s_endpgm")
    k.label("K1_PF")
    k(f"""s_load_dwordx2 s[4:5], s[0:1], {KOFF['w1']}
          s_waitcnt lgkmcnt(0)""")
    srd(k, 12, 4, 5, 2048*1536*2)
    k(f"""s_sub_u32 s28, s2, 512
          s_lshl_b32 s28, s28, 2
          s_add_u32 s28, s28, s3
          s_mul_i32 s28, s28, 24576
          v_lshlrev_b32 v3, 7, v2
          buffer_load_dword v4, v3, s[12:15], s28 offen
          s_add_u32 s28, s28, 8192
          buffer_load_dword v5, v3, s[12:15], s28 offen
          s_add_u32 s28, s28, 8192
          buffer_load_dword v6, v3, s[12:15], s28 offen""")
    k("s_getpc_b64 s[40:41]")
    k.label("K1_PC")
    k(f"""s_and_b32 s41, s41, 0xffff
          s_mov_b32 s42, TEXT_END - K1_PC
          s_mov_b32 s43, 0x00020000
          s_lshl_b32 s28, s3, 13
          s_add_u32 s28, s28, k2_kernel - K1_PC
          buffer_load_dword v7, v3, s[40:43], s28 offen
          s_add_u32 s28, s28, 32768
          buffer_load_dword v8, v3, s[40:43], s28 offen
          s_waitcnt vmcnt(0)""")
    k.label("K1_END")
    k("s_endpgm")
    return k.text(), dict(vgpr=144, sgpr=80, lds=53248, grid=576, block=256)

def kernel_wrap(label, body, meta):
    v = meta['vgpr']
    s = f""".globl {label}
.p2align 8
.type {label},@function
{label}:
{body}"""
    kd = f""".p2align 6
.amdhsa_kernel {label}
  .amdhsa_next_free_vgpr {v}
  .amdhsa_next_free_sgpr {meta['sgpr']}
  .amdhsa_accum_offset {(v+3)//4*4}
  .amdhsa_group_segment_fixed_size 0
  .amdhsa_kernarg_size 112
  .amdhsa_user_sgpr_count 2
  .amdhsa_user_sgpr_kernarg_segment_ptr 1
  .amdhsa_system_sgpr_workgroup_id_x 1
.end_amdhsa_kernel
"""
    return s, kd

def main():
    ks = []
    ks.append(("k1_kernel",) + gen_k1())
    import gen2
    if hasattr(gen2, "gen_k2"):
        ks.append(("k2_kernel",) + gen2.gen_k2(0))
    import gen3
    ks.append(("k3_kernel",) + gen3.gen_k3())
    head = open(f"cdna_kernels/{NAME}.s.ref").read().split("; Override launch")[0]
    out = head
    for label, body, meta in ks:
        out += f"; @launch kernel={label} grid=({meta['grid']},1,1) block=({meta['block']},1,1) lds={meta['lds']}\n"
    out += '.amdgcn_target "amdgcn-amd-amdhsa--gfx950"\n.text\n'
    kds = ""
    for label, body, meta in ks:
        s, kd = kernel_wrap(label, body, meta)
        out += s; kds += kd
    out += 'TEXT_END:\n.section .rodata,"a"\n' + kds
    open(f"cdna_kernels/{NAME}.s", "w").write(out)

if __name__ == "__main__":
    main()
```

```python
from gen import *
import layout as L

KVB = 13312
NKV = 4
G0 = NKV * KVB
import os
STAMP = os.environ.get('STAMP')

class VM:
    def __init__(self): self.ops = []
    def add(self, tag, n=1): self.ops += [tag] * n
    def wait_for(self, tags):
        last = -1
        for i, t in enumerate(self.ops):
            if t in tags: last = i
        return len(self.ops) - 1 - last

def gen_k2(half=0):
    T = 'K2'
    NPH = 16
    TPP = 4
    k = K(); k.endl = f"{T}_END"
    prologue(k, 256)
    k(f"""s_load_dwordx2 s[20:21], s[0:1], {KOFF['ws']}
          s_load_dwordx2 s[4:5], s[0:1], {KOFF['w2' if half else 'w1']}
          s_load_dwordx2 s[6:7], s[0:1], {KOFF['b2' if half else 'b1']}
          s_load_dwordx2 s[66:67], s[0:1], {KOFF['w2']}
          s_load_dwordx2 s[68:69], s[0:1], {KOFF['wo']}
          s_waitcnt lgkmcnt(0)
          s_cmp_ge_u32 s3, 8
          s_cbranch_scc1 {T}_LOADER""")
    srd_off(k, 8, 20, 21, L.Q, 2048*640*2)
    srd_off(k, 12, 20, 21, L.O, 2048*640*2)
    srd_off(k, 16, 20, 21, L.PART, 256*8*13*256)
    if STAMP:
        k("s_memtime s[40:41]\n s_memrealtime s[48:49]")
    k("""s_lshr_b32 s22, s2, 3
         s_and_b32 s23, s2, 7
         s_lshl_b32 s23, s23, 8
         s_lshl_b32 s24, s3, 5
         s_add_u32 s23, s23, s24
         v_and_b32 v3, 31, v2
         v_lshrrev_b32 v4, 5, v2
         v_add_u32 v5, s23, v3
         s_mov_b32 s25, 1280
         v_mul_lo_u32 v5, v5, s25
         s_mul_i32 s24, s22, 40
         v_add_u32 v5, s24, v5
         s_lshl_b32 s24, s2, 3
         s_add_u32 s24, s24, s3
         s_mul_i32 s24, s24, 3328
         v_lshlrev_b32 v7, 2, v2""")
    Q1, Q2 = 8, 12
    KS_ = [14, 20]
    VF = 26
    S0, S1 = 42, 58
    O = 74
    CM = 90
    P = 106
    VT, VT2, VMX, VM_ = 114, 115, 116, 117
    ACUR, BCUR, ANXT, BNXT, LA, LB = 118, 119, 120, 121, 122, 123
    k(f"""v_lshlrev_b32 v6, 4, v4
          v_add_u32 v6, v5, v6
          buffer_load_dwordx2 v[{Q1}:{Q1+1}], v6, s[8:11], 0 offen
          buffer_load_dwordx2 v[{Q1+2}:{Q1+3}], v6, s[8:11], 0 offen offset:8
          buffer_load_dwordx2 v[{Q2}:{Q2+1}], v5, s[8:11], 0 offen offset:32""")
    if half:
        for i in range(12):
            k(f"buffer_load_dword v{O+i}, v7, s[16:19], s24 offen offset:{256*i}")
        k(f"buffer_load_dword v{CM}, v7, s[16:19], s24 offen offset:{256*12}")
    k(f"""v_lshlrev_b32 v{LA}, 9, v4
          v_lshlrev_b32 v6, 4, v3
          v_add_u32 v{LA}, v{LA}, v6
          v_lshlrev_b32 v{LB}, 3, v3
          v_mov_b32 v{ACUR}, v{LA}
          v_mov_b32 v{BCUR}, v{LB}
          v_add_u32 v{ANXT}, {KVB}, v{LA}
          v_add_u32 v{BNXT}, {KVB}, v{LB}
          s_mov_b32 s26, {KVB}
          s_mov_b32 s29, 0""")
    for i in range(16):
        if half and i < 12: continue
        k(f"v_mov_b32 v{O+i}, 0")
    for i in range(4):
        k(f"v_mov_b32 v{P+4+i}, 0")
        k(f"v_mov_b32 v{VF+12+i}, 0")
    k(f"""s_waitcnt vmcnt(0)
          v_cmp_gt_u32 vcc, 32, v2
          s_nop 1
          v_cndmask_b32 v{Q2}, 0, v{Q2}, vcc
          v_cndmask_b32 v{Q2+1}, 0, v{Q2+1}, vcc""")
    if half:
        for i in range(1, 16):
            k(f"v_mov_b32 v{CM+i}, v{CM}")
    k("s_barrier")
    def rdK(a, b, t, ks):
        r = KS_[ks]
        k(f"ds_read_b128 v[{r}:{r+3}], v{a} offset:{t*1024}")
        k(f"ds_read_b64 v[{r+4}:{r+5}], v{b} offset:{4096 + t*256}")
    def rdV(a, t, vs):
        for j in range(2):
            r = VF + 8*vs + 4*j
            k(f"ds_read_b128 v[{r}:{r+3}], v{a} offset:{5120 + (2*t+j)*1024}")
    def qk(i, S, ks, c=None):
        r = KS_[ks]
        c = c or f"v[{S}:{S+15}]"
        if i == 0: return f"v_mfma_f32_32x32x16_bf16 v[{S}:{S+15}], v[{r}:{r+3}], v[{Q1}:{Q1+3}], {c}"
        return f"v_mfma_f32_32x32x8_bf16 v[{S}:{S+15}], v[{r+4}:{r+5}], v[{Q2}:{Q2+1}], {c}"
    def maxtree(S, extra=None):
        s = lambda i: f"v{S+i}"
        k(f"""v_max3_f32 v{VMX}, {s(0)}, {s(1)}, {s(2)}
              v_max3_f32 v{VT}, {s(3)}, {s(4)}, {s(5)}
              v_max3_f32 v{VMX}, v{VMX}, {s(6)}, {s(7)}
              v_max3_f32 v{VT}, v{VT}, {s(8)}, {s(9)}
              v_max3_f32 v{VMX}, v{VMX}, {s(10)}, {s(11)}
              v_max3_f32 v{VT}, v{VT}, {s(12)}, {s(13)}
              v_max3_f32 v{VMX}, v{VMX}, {s(14)}, {s(15)}""")
        if extra: k(f"v_max3_f32 v{VMX}, v{VMX}, v{VT}, v{extra}")
        else: k(f"v_max_f32 v{VMX}, v{VMX}, v{VT}")
        k(f"""v_mov_b32 v{VT}, v{VMX}
              s_nop 1
              v_permlane32_swap_b32 v{VMX}, v{VT}
              v_max_f32 v{VMX}, v{VMX}, v{VT}""")
    if STAMP:
        k("s_memtime s[42:43]")
    rdK(ACUR, BCUR, 0, 0)
    rdK(ACUR, BCUR, 1, 1)
    rdV(ACUR, 0, 0)
    k("s_waitcnt lgkmcnt(4)")
    if not half:
        k(qk(0, S0, 0, "0")); k(qk(1, S0, 0))
        k("s_nop 7\n s_nop 4")
        maxtree(S0)
        for i in range(16):
            k(f"v_sub_f32 v{CM+i}, 0, v{VMX}")
        k("s_nop 1")
    k(qk(0, S0, 0, f"v[{CM}:{CM+15}]")); k(qk(1, S0, 0))
    k("s_nop 7\n s_nop 4")
    k.label(f"{T}_ALOOP")
    for t in range(TPP):
        Sc, Sn = (S0, S1) if t % 2 == 0 else (S1, S0)
        e = lambda i: k(f"v_exp_f32 v{Sc+i}, v{Sc+i}")
        c = lambda i: k(f"v_cvt_pk_bf16_f32 v{P+i}, v{Sc+2*i}, v{Sc+2*i+1}")
        vprev = VF + 8*((t+1) % 2); vcur = VF + 8*(t % 2)
        k("s_waitcnt lgkmcnt(2)")
        k(qk(0, Sn, (t+1) % 2, f"v[{CM}:{CM+15}]"))
        if t + 2 < TPP: rdK(ACUR, BCUR, t + 2, t % 2)
        else: rdK(ANXT, BNXT, t + 2 - TPP, t % 2)
        for i in range(0, 5): e(i)
        k(f"v_mfma_f32_32x32x16_bf16 v[{O}:{O+15}], v[{vprev+4}:{vprev+7}], v[{P+4}:{P+7}], v[{O}:{O+15}]")
        if t + 1 < TPP: rdV(ACUR, t + 1, (t + 1) % 2)
        else: rdV(ANXT, 0, 0)
        for i in range(5, 8): e(i)
        k("s_nop 0")
        for i in range(0, 4): c(i)
        k(qk(1, Sn, (t+1) % 2))
        for i in range(8, 13): e(i)
        k("s_waitcnt lgkmcnt(4)")
        k(f"v_mfma_f32_32x32x16_bf16 v[{O}:{O+15}], v[{vcur}:{vcur+3}], v[{P}:{P+3}], v[{O}:{O+15}]")
        for i in range(13, 16): e(i)
        k("s_nop 0")
        for i in range(4, 8): c(i)
    k(f"""v_mov_b32 v{ACUR}, v{ANXT}
          v_mov_b32 v{BCUR}, v{BNXT}
          s_add_u32 s26, s26, {KVB}
          s_cmp_ge_u32 s26, {NKV*KVB}
          s_cselect_b32 s26, 0, s26
          v_add_u32 v{ANXT}, s26, v{LA}
          v_add_u32 v{BNXT}, s26, v{LB}
          s_add_u32 s29, s29, 1
          s_cmp_lt_u32 s29, {NPH}
          s_cbranch_scc0 {T}_AEND
          s_barrier
          s_branch {T}_ALOOP""")
    k.label(f"{T}_AEND")
    if STAMP:
        srd_off(k, 52, 20, 21, L.END + half*(1<<20), 1<<20)
        k(f"""s_memtime s[44:45]
              s_memrealtime s[50:51]
              s_waitcnt lgkmcnt(0)
              s_sub_u32 s42, s42, s40
              s_sub_u32 s44, s44, s40
              s_sub_u32 s50, s50, s48
              v_mov_b32 v{VT}, s42
              v_mov_b32 v{VT2}, s44
              v_mov_b32 v{VMX}, s50
              s_lshl_b32 s46, s2, 3
              s_add_u32 s46, s46, s3
              s_lshl_b32 s46, s46, 4
              v_mov_b32 v{VM_}, 0
              buffer_store_dword v{VT}, v{VM_}, s[52:55], s46 offen
              buffer_store_dword v{VT2}, v{VM_}, s[52:55], s46 offen offset:4
              buffer_store_dword v{VMX}, v{VM_}, s[52:55], s46 offen offset:8""")
    k(f"""v_mfma_f32_32x32x16_bf16 v[{O}:{O+15}], v[{VF+12}:{VF+15}], v[{P+4}:{P+7}], v[{O}:{O+15}]
          s_waitcnt lgkmcnt(0)
          s_nop 7
          s_nop 7""")
    if True:
        k.label(f"{T}_NORM")
        k(f"""v_mov_b32 v{VT}, v{O+8}
              v_mov_b32 v{VT2}, v{O+8}
              v_mov_b32 v{VM_}, 0x7149f2ca
              s_nop 1
              v_permlane32_swap_b32 v{VT}, v{VT2}
              s_cmp_eq_u32 s29, 99
              s_cbranch_scc1 {T}_NOCHK
              v_cmp_nlt_f32 vcc, v{VT2}, v{VM_}
              s_cbranch_vccnz {T}_FB""")
        k.label(f"{T}_NOCHK")
        k(f"v_rcp_f32 v{VT2}, v{VT2}\n s_nop 0")
        for i in range(12):
            k(f"v_mul_f32 v{O+i}, v{O+i}, v{VT2}")
        for i in range(6):
            k(f"v_cvt_pk_bf16_f32 v{P+i}, v{O+2*i}, v{O+2*i+1}")
        k(f"""v_lshlrev_b32 v6, 3, v4
              v_add_u32 v6, v5, v6
              buffer_store_dwordx2 v[{P}:{P+1}], v6, s[12:15], 0 offen
              buffer_store_dwordx2 v[{P+2}:{P+3}], v6, s[12:15], 0 offen offset:16
              v_cmp_gt_u32 vcc, 32, v2
              s_and_saveexec_b64 s[30:31], vcc
              buffer_store_dwordx2 v[{P+4}:{P+5}], v5, s[12:15], 0 offen offset:32
              s_endpgm""")
        k.label(f"{T}_FB")
        srd_off(k, 32, 20, 21, L.KA, 2048*32)
        srd_off(k, 36, 20, 21, L.VT, 21*4096)
        srd_off(k, 40, 20, 21, L.KB, 2048*8)
        r = KS_[0]
        k(f"""v_lshlrev_b32 v{BCUR}, 5, v3
              v_lshlrev_b32 v6, 4, v4
              v_add_u32 v{BCUR}, v{BCUR}, v6
              v_lshlrev_b32 v{ACUR}, 3, v3
              v_lshlrev_b32 v{ANXT}, 12, v3
              v_add_u32 v{ANXT}, v{ANXT}, v6
              v_mov_b32 v{VM_}, 0xf149f2ca
              s_mov_b32 s29, 0""")
        for i in range(16): k(f"v_mov_b32 v{O+i}, 0")
        k.label(f"{T}_FBL")
        k(f"""s_lshl_b32 s30, s29, 10
              s_lshl_b32 s31, s29, 6
              s_lshl_b32 s28, s29, 8
              buffer_load_dwordx4 v[{r}:{r+3}], v{BCUR}, s[32:35], s30 offen
              buffer_load_dwordx2 v[{r+4}:{r+5}], v{ACUR}, s[40:43], s28 offen
              buffer_load_dwordx4 v[{VF}:{VF+3}], v{ANXT}, s[36:39], s31 offen
              buffer_load_dwordx4 v[{VF+4}:{VF+7}], v{ANXT}, s[36:39], s31 offen offset:32
              s_waitcnt vmcnt(0)""")
        k(qk(0, S0, 0, "0")); k(qk(1, S0, 0))
        k("s_nop 7\n s_nop 7")
        maxtree(S0, VM_)
        k(f"""v_sub_f32 v{VT}, v{VM_}, v{VMX}
              v_exp_f32 v{VT}, v{VT}
              v_mov_b32 v{VM_}, v{VMX}""")
        for i in range(12): k(f"v_mul_f32 v{O+i}, v{O+i}, v{VT}")
        for i in range(16):
            k(f"v_sub_f32 v{S0+i}, v{S0+i}, v{VM_}")
            k(f"v_exp_f32 v{S0+i}, v{S0+i}")
        k("s_nop 0")
        for i in range(8): k(f"v_cvt_pk_bf16_f32 v{P+i}, v{S0+2*i}, v{S0+2*i+1}")
        k(f"""s_nop 1
              v_mfma_f32_32x32x16_bf16 v[{O}:{O+15}], v[{VF}:{VF+3}], v[{P}:{P+3}], v[{O}:{O+15}]
              v_mfma_f32_32x32x16_bf16 v[{O}:{O+15}], v[{VF+4}:{VF+7}], v[{P+4}:{P+7}], v[{O}:{O+15}]
              s_nop 7
              s_nop 7
              s_add_u32 s29, s29, 1
              s_cmp_lt_u32 s29, 64
              s_cbranch_scc1 {T}_FBL
              s_mov_b32 s29, 99
              s_branch {T}_NORM""")
    k.label(f"{T}_LOADER")
    k("s_sub_u32 s3, s3, 8\n s_setprio 3")
    srd_off(k, 8, 20, 21, L.KA, 2048*32)
    srd_off(k, 12, 20, 21, L.KB, 2048*8)
    srd_off(k, 16, 20, 21, L.VT, 21*4096)
    KS = 128
    TS = 64 * KS * 2
    STG = 2 * TS
    NG = 3
    if not half:
        NT = 30; NSTEP = 16
        srd_off(k, 40, 20, 21, L.H, 2048*640*2)
        srd(k, 44, 4, 5, 2048*1536*2)
        srd(k, 48, 6, 7, 1536*2)
        srd_off(k, 52, 20, 21, L.U, 640*1536*2)
        k(f"""s_and_b32 s60, s2, 7
              s_lshr_b32 s61, s2, 3
              s_mul_hi_u32 s22, s61, 0x2aaaaaab
              s_mul_i32 s23, s22, 6
              s_sub_u32 s23, s61, s23
              s_lshr_b32 s34, s60, 2
              s_mul_i32 s34, s34, 5
              s_add_u32 s22, s22, s34
              s_and_b32 s34, s60, 3
              s_mul_i32 s34, s34, 6
              s_add_u32 s23, s23, s34
              s_mov_b32 s24, 3072
              s_mov_b32 s25, 1280
              s_mul_i32 s31, s3, {4*8*3072}
              s_lshl_b32 s34, s23, 7
              s_add_u32 s31, s31, s34
              s_mul_i32 s32, s3, {4*8*1280}
              s_lshl_b32 s34, s22, 7
              s_add_u32 s32, s32, s34
              s_lshl_b32 s33, s3, 12
              s_and_b32 s35, s3, 1
              s_lshr_b32 s36, s3, 1
              s_mov_b32 s37, s35
              s_mov_b32 s38, s36""")
        tr_voff(k, 3, 2, 24, 10, 11)
        tr_voff(k, 4, 2, 25, 10, 11)
        tr_rd(k, 6, 2, 37, 10, 11)
        tr_rd(k, 7, 2, 38, 10, 11)
        k(f"v_add_u32 v6, {G0}, v6\n v_add_u32 v7, {G0}, v7\n v_add_u32 v12, 0x10000, v6\n v_add_u32 v13, 0x10000, v7")
        opM = Opnd('tr', 44, 3072, [3], 31, 6)
        opN = Opnd('tr', 40, 1280, [4], 32, 7)
        opM2 = Opnd('tr', 44, 3072, [3], 31, 12)
        opN2 = Opnd('tr', 40, 1280, [4], 32, 13)
        ACC = 16; FM = 32; FN = 44
    else:
        NT = 20; NSTEP = 12
        srd_off(k, 40, 20, 21, L.U, 640*1536*2)
        srd(k, 44, 4, 5, 1536*2048*2)
        srd(k, 48, 6, 7, 2048*2)
        srd_off(k, 52, 20, 21, L.BB, 2048*640*2)
        k(f"""s_and_b32 s60, s2, 7
              s_lshr_b32 s61, s2, 3
              s_mul_hi_u32 s22, s61, 0x33333334
              s_mul_i32 s23, s22, 5
              s_sub_u32 s23, s61, s23
              s_and_b32 s34, s60, 3
              s_lshl_b32 s34, s34, 2
              s_add_u32 s22, s22, s34
              s_lshr_b32 s34, s60, 2
              s_mul_i32 s34, s34, 5
              s_add_u32 s23, s23, s34
              s_mov_b32 s24, 3072
              s_mov_b32 s25, 4096
              s_and_b32 s35, s3, 1
              s_lshr_b32 s36, s3, 1
              s_lshl_b32 s31, s23, 6
              s_lshl_b32 s34, s3, 4
              s_add_u32 s31, s31, s34
              s_mul_i32 s31, s31, 3072
              s_lshl_b32 s32, s3, 17
              s_lshl_b32 s34, s22, 8
              s_add_u32 s32, s32, s34
              s_add_u32 s56, s32, 128
              s_lshl_b32 s33, s3, 12
              s_mov_b32 s38, 0""")
        tr_voff(k, 4, 2, 25, 10, 11)
        tr_rd(k, 7, 2, 38, 10, 11)
        k(f"""s_lshl_b32 s34, s36, 14
              s_add_u32 s34, s34, {G0}
              v_add_u32 v7, s34, v7
              v_xor_b32 v14, 64, v7
              v_add_u32 v12, 0x10000, v7
              v_add_u32 v13, 0x10000, v14
              s_mov_b32 s37, s35""")
        dir_voff128(k, [60+16, 61+16, 62+16, 63+16], 2, 24, 10, 11)
        dir_rd(k, 6, 2, 37, KS, 10, 11)
        U0 = G0 + NG*STG
        k(f"v_add_u32 v6, {U0}, v6")
        opU = Opnd('dir', 40, 3072, [76, 77, 78, 79], 31, 6)
        opN0 = Opnd('tr', 44, 4096, [4], 32, 7)
        opN1 = Opnd('tr', 44, 4096, [4], 56, 7)
        opNa = Opnd('tr', 44, 4096, [4], 32, 7)
        opNb = Opnd('tr', 44, 4096, [4], 32, 14)
        opNa2 = Opnd('tr', 44, 4096, [4], 32, 12)
        opNb2 = Opnd('tr', 44, 4096, [4], 32, 13)
        ACC = 16; ACC2 = 32; FN = 48; FN2 = 60; FM = 80
    k("""v_and_b32 v10, 31, v2
         v_lshrrev_b32 v11, 5, v2
         v_lshlrev_b32 v11, 4, v11
         v_lshlrev_b32 v8, 5, v10
         v_add_u32 v8, v8, v11
         v_lshlrev_b32 v9, 4, v2
         v_lshlrev_b32 v5, 12, v10
         v_add_u32 v5, v5, v11
         s_lshl_b32 s58, s3, 10
         s_lshl_b32 s57, s3, 11
         s_lshl_b32 s59, s3, 6
         s_lshl_b32 s34, s3, 4
         s_mov_b32 s62, 0xffff
         s_mov_b32 s63, 0
         s_lshl_b64 s[62:63], s[62:63], s34""")
    def kv_dma(c):
        slot = (c % NKV) * KVB
        k(f"""s_add_u32 m0, s58, {slot}
              s_add_u32 s34, s58, {c*4096}
              buffer_load_dwordx4 v8, s[8:11], s34 offen lds
              s_add_u32 m0, s57, {slot + 5120}
              s_add_u32 s34, s59, {c*256}
              buffer_load_dwordx4 v5, s[16:19], s34 offen lds
              s_add_u32 m0, s57, {slot + 5120 + 1024}
              s_add_u32 s34, s59, {c*256 + 32}
              buffer_load_dwordx4 v5, s[16:19], s34 offen lds
              s_mov_b32 m0, {slot + 4096}
              s_mov_b32 s34, {c*1024}
              s_mov_b64 exec, s[62:63]
              buffer_load_dwordx4 v9, s[12:15], s34 offen lds
              s_mov_b64 exec, -1""")
    def g_dma(t):
        b = G0 + (t % NG) * STG
        if not half:
            dma_tile(k, opM, KS, t*KS, b, 33, 34)
            dma_tile(k, opN, KS, t*KS, b + TS, 33, 34)
            return 8
        dma_tile(k, opN0, KS, t*KS, b, 33, 34)
        dma_tile(k, opN1, KS, t*KS, b + TS, 33, 34)
        return 8
    def u_dma(t):
        dma_tile(k, opU, KS, t*KS, U0 + (t % 2)*TS, 33, 34)
        return 4
    nk = KS // 16
    def epilogue_u():
        k(f"""v_and_b32 v10, 31, v2
              s_lshl_b32 s34, s22, 6
              s_lshl_b32 s39, s36, 5
              s_add_u32 s34, s34, s39
              v_add_u32 v10, s34, v10
              v_mul_lo_u32 v10, v10, s24
              v_lshrrev_b32 v11, 5, v2
              v_lshlrev_b32 v11, 3, v11
              s_lshl_b32 s34, s23, 7
              s_lshl_b32 s39, s35, 6
              s_add_u32 s34, s34, s39
              v_add_u32 v11, s34, v11
              v_add_u32 v10, v10, v11""")
        for j in range(4):
            k(f"buffer_load_dwordx2 v[{56+2*j}:{57+2*j}], v11, s[48:51], 0 offen offset:{16*j}")
        k("s_mov_b32 s34, 0x3d372713\n s_mov_b32 s39, 0xc0135761\n s_waitcnt vmcnt(0)\n s_nop 7")
        for j in range(4):
            for h2 in range(2):
                a = ACC + 4*j + 2*h2; br = 56 + 2*j + h2
                k(f"""v_cvt_pk_bf16_f32 v64, v{a}, v{a+1}
                      v_lshlrev_b32 v65, 16, v64
                      v_and_b32 v64, 0xffff0000, v64
                      v_lshlrev_b32 v66, 16, v{br}
                      v_and_b32 v67, 0xffff0000, v{br}
                      v_add_f32 v65, v65, v66
                      v_add_f32 v64, v64, v67
                      v_cvt_pk_bf16_f32 v64, v65, v64
                      v_lshlrev_b32 v65, 16, v64
                      v_and_b32 v64, 0xffff0000, v64
                      v_mul_f32 v66, v65, v65
                      v_mul_f32 v67, v64, v64
                      v_fma_f32 v66, v66, s34, 1.0
                      v_fma_f32 v67, v67, s34, 1.0
                      v_mul_f32 v66, v66, v65
                      v_mul_f32 v67, v67, v64
                      v_mul_f32 v66, s39, v66
                      v_mul_f32 v67, s39, v67
                      v_exp_f32 v66, v66
                      v_exp_f32 v67, v67
                      s_nop 0
                      v_add_f32 v66, 1.0, v66
                      v_add_f32 v67, 1.0, v67
                      v_rcp_f32 v66, v66
                      v_rcp_f32 v67, v67
                      s_nop 0
                      v_mul_f32 v66, v66, v65
                      v_mul_f32 v67, v67, v64
                      v_cvt_pk_bf16_f32 v{68+2*j+h2}, v66, v67""")
        for j in range(4):
            k(f"buffer_store_dwordx2 v[{68+2*j}:{69+2*j}], v10, s[52:55], 0 offen offset:{16*j}")
    def epilogue_y():
        k(f"""v_and_b32 v10, 31, v2
              s_lshl_b32 s34, s22, 7
              s_lshl_b32 s39, s36, 6
              s_add_u32 s34, s34, s39
              v_add_u32 v10, s34, v10
              v_lshlrev_b32 v12, 1, v10
              buffer_load_ushort v72, v12, s[48:51], 0 offen
              buffer_load_ushort v73, v12, s[48:51], 0 offen offset:64
              s_mov_b32 s39, 1280
              v_mul_lo_u32 v10, v10, s39
              v_lshrrev_b32 v11, 5, v2
              v_lshlrev_b32 v11, 3, v11
              s_lshl_b32 s34, s23, 7
              s_lshl_b32 s39, s35, 6
              s_add_u32 s34, s34, s39
              v_add_u32 v11, s34, v11
              v_add_u32 v10, v10, v11
              v_add_u32 v11, {32*1280}, v10
              s_waitcnt vmcnt(0)
              v_lshlrev_b32 v72, 16, v72
              v_lshlrev_b32 v73, 16, v73
              s_nop 7""")
        for a_i, (ab, b2r, ad) in enumerate(((ACC, 72, 10), (ACC2, 73, 11))):
            for j in range(4):
                for h2 in range(2):
                    a = ab + 4*j + 2*h2
                    k(f"""v_cvt_pk_bf16_f32 v96, v{a}, v{a+1}
                          v_lshlrev_b32 v97, 16, v96
                          v_and_b32 v96, 0xffff0000, v96
                          v_add_f32 v97, v97, v{b2r}
                          v_add_f32 v96, v96, v{b2r}
                          v_cvt_pk_bf16_f32 v{100+8*a_i+2*j+h2}, v97, v96""")
            for j in range(4):
                r = 100 + 8*a_i + 2*j
                k(f"buffer_store_dwordx2 v[{r}:{r+1}], v{ad}, s[52:55], 0 offen offset:{16*j}")
    k(f"s_cmp_ge_u32 s61, {NT}\n s_cbranch_scc1 {T}_KVONLY")
    for gemm in (True, False):
        if not gemm: k.label(f"{T}_KVONLY")
        vm = VM()
        def KV(c):
            kv_dma(c); vm.add(("kv", c), 4)
        def G(t):
            vm.add(("g", t), g_dma(t))
        def UU(t):
            vm.add(("u", t), u_dma(t))
        phase_of = [0,1,2,3,4,5,6,7,7,8,9,10,11,12,13,14]
        issued = set()
        KV(0); KV(1)
        if gemm: G(0); issued.add(0)
        KV(2)
        if gemm:
            G(1); issued.add(1); G(2); issued.add(2)
        for ph in range(NPH):
            mysteps = [st for st in range(NSTEP) if phase_of[st] == ph] if gemm else []
            need = [("kv", ph), ("kv", min(ph + 1, NPH - 1))] + [("g", st) for st in mysteps]
            k(f"s_waitcnt vmcnt({vm.wait_for(need)})\n s_barrier")
            save = k.L; k.L = []
            if ph == 6:
                srd(k, 72, 66, 67, 1536*2048*2)
                srd(k, 76, 68, 69, 640*640*2)
                k(f"""s_lshl_b32 s34, s2, 2
                      s_add_u32 s34, s34, s3
                      s_mul_i32 s39, s34, 6144
                      v_lshlrev_b32 v15, 7, v2
                      buffer_load_dword v122, v15, s[72:75], s39 offen
                      s_lshl_b32 s39, s34, 13
                      buffer_load_dword v121, v15, s[76:79], s39 offen""")
                vm.add("pf", 2)
            if ph + 3 < NPH: KV(ph + 3)
            if gemm:
                for st in range(NSTEP):
                    if st not in issued and phase_of[st - NG] < ph:
                        G(st); issued.add(st)
            lines = k.L; k.L = save
            chunks = []; cur = []
            for ln in lines:
                cur.append(ln)
                if "buffer_load" in ln and "v9," not in ln:
                    chunks.append(cur); cur = []
                if "exec, -1" in ln:
                    chunks.append(cur); cur = []
            assert not cur
            def emit_chunks(n):
                for _ in range(n):
                    if chunks: k.L += chunks.pop(0)
            for p in mysteps:
                b = (p % NG) * STG
                cnt = []
                hi = b >= 65536
                bo = b - 65536 if hi else b
                def rd(kk):
                    c = frag_read(k, opM2 if hi else opM, KS, kk, bo, FM + 4*(kk % 3), 0)
                    c += frag_read(k, opN2 if hi else opN, KS, kk, bo + TS, FN + 4*(kk % 3), 0)
                    cnt.append(c)
                rd(0); rd(1)
                emit_chunks(2)
                for kk in range(nk):
                    if kk + 2 < nk: rd(kk + 2)
                    k(f"s_waitcnt lgkmcnt({sum(cnt[kk+1:])})")
                    bb = FN + 4*(kk % 3)
                    c = "0" if (p == 0 and kk == 0) else f"v[{ACC}:{ACC+15}]"
                    a = FM + 4*(kk % 3)
                    k(f"v_mfma_f32_32x32x16_bf16 v[{ACC}:{ACC+15}], v[{a}:{a+3}], v[{bb}:{bb+3}], {c}")
                    emit_chunks(2)
            emit_chunks(99)
            if gemm and NSTEP - 1 in mysteps:
                epilogue_u()
                vm.ops = []
        if STAMP and gemm:
            srd_off(k, 52, 20, 21, L.END + (2+half)*(1<<20), 1<<20)
            k(f"""s_lshl_b32 s34, s2, 2
                  s_add_u32 s34, s34, s3
                  s_lshl_b32 s34, s34, 8
                  v_lshlrev_b32 v10, 2, v2
                  buffer_store_dword v123, v10, s[52:55], s34 offen""")
        k("s_endpgm")
    k.label(f"{T}_END")
    k("s_endpgm")
    return k.text(), dict(vgpr=124, sgpr=84, lds=G0 + NG*STG + (2*TS if half else 0), grid=256, block=768)

def gen_k3():
    k = K(); k.endl = "K3_END"
    prologue(k, 320)
    k(f"""s_load_dwordx2 s[20:21], s[0:1], {KOFF['ws']}
          s_load_dwordx2 s[4:5], s[0:1], {KOFF['wo']}
          s_load_dwordx2 s[24:25], s[0:1], {KOFF['out']}
          s_waitcnt lgkmcnt(0)""")
    srd(k, 8, 4, 5, 640*640*2)
    srd_off(k, 12, 20, 21, L.O, 2048*640*2)
    srd_off(k, 16, 20, 21, L.BB, 2048*640*2)
    srd_off(k, 48, 20, 21, L.G, 2048*4)
    srd(k, 52, 24, 25, 2048*640*2)
    KS, NS = 64, 4
    ipw = 2
    k(f"""s_and_b32 s60, s2, 7
          s_lshr_b32 s61, s2, 3
          s_mul_hi_u32 s28, s61, 0x33333334
          s_mul_i32 s29, s28, 5
          s_sub_u32 s29, s61, s29
          s_and_b32 s34, s60, 3
          s_lshl_b32 s34, s34, 3
          s_add_u32 s28, s28, s34
          s_lshr_b32 s34, s60, 2
          s_mul_i32 s34, s34, 5
          s_add_u32 s29, s29, s34
          s_mov_b32 s30, 1280
          s_lshl_b32 s33, s3, 11
          s_and_b32 s35, s3, 1
          s_lshr_b32 s36, s3, 1
          s_mul_i32 s58, s3, {ipw*8*1280}
          s_lshl_b32 s34, s29, 7
          s_add_u32 s58, s58, s34
          s_lshl_b32 s59, s28, 6
          s_mul_i32 s34, s3, {ipw*8}
          s_add_u32 s59, s59, s34
          s_mul_i32 s59, s59, 1280""")
    tr_voff(k, 3, 2, 30, 10, 11)
    dir_voff64(k, [4, 5], 2, 30, 10, 11)
    k("s_mov_b32 s37, s35"); tr_rd(k, 6, 2, 37, 10, 11)
    k("s_mov_b32 s37, s36"); dir_rd(k, 9, 2, 37, KS, 10, 11)
    opWo = Opnd('tr', 8, 1280, [3], 58, 6)
    opO = Opnd('dir', 12, 1280, [4, 5], 59, 9)
    AA = 16
    k(f"""v_and_b32 v10, 31, v2
          s_lshl_b32 s34, s28, 6
          s_lshl_b32 s39, s36, 5
          s_add_u32 s34, s34, s39
          v_add_u32 v10, s34, v10
          v_lshlrev_b32 v11, 2, v10
          buffer_load_dword v60, v11, s[48:51], 0 offen
          v_mul_lo_u32 v10, v10, s30
          v_lshrrev_b32 v11, 5, v2
          v_lshlrev_b32 v11, 3, v11
          v_add_u32 v10, v10, v11
          s_lshl_b32 s34, s29, 7
          s_lshl_b32 s39, s35, 6
          s_add_u32 s34, s34, s39
          v_add_u32 v61, s34, v10""")
    for j in range(4):
        k(f"buffer_load_dwordx2 v[{64+2*j}:{65+2*j}], v61, s[16:19], 0 offen offset:{16*j}")
    k("s_waitcnt vmcnt(0)")
    steps = [(opWo, opO, t*KS, t*KS, AA, t == 0) for t in range(640 // KS)]
    gemm_ring(k, steps, KS, NS, 0, 33, 34, 32, 44, 12)
    k(f"""v_sub_f32 v15, 1.0, v60
          v_cvt_pk_bf16_f32 v15, v15, v15
          v_and_b32 v15, 0xffff0000, v15
          s_nop 7
          s_nop 3""")
    for j in range(4):
        for h2 in range(2):
            a = AA + 4*j + 2*h2; b = 64 + 2*j + h2
            k(f"""v_cvt_pk_bf16_f32 v56, v{a}, v{a+1}
                  v_lshlrev_b32 v58, 16, v56
                  v_and_b32 v56, 0xffff0000, v56
                  v_lshlrev_b32 v59, 16, v{b}
                  v_and_b32 v57, 0xffff0000, v{b}
                  v_mul_f32 v58, v58, v60
                  v_mul_f32 v56, v56, v60
                  v_mul_f32 v59, v59, v15
                  v_mul_f32 v57, v57, v15
                  v_cvt_pk_bf16_f32 v56, v58, v56
                  v_cvt_pk_bf16_f32 v57, v59, v57
                  v_lshlrev_b32 v58, 16, v56
                  v_and_b32 v56, 0xffff0000, v56
                  v_lshlrev_b32 v59, 16, v57
                  v_and_b32 v57, 0xffff0000, v57
                  v_add_f32 v58, v58, v59
                  v_add_f32 v56, v56, v57
                  v_cvt_pk_bf16_f32 v{84+2*j+h2}, v58, v56""")
    for j in range(4):
        k(f"buffer_store_dwordx2 v[{84+2*j}:{85+2*j}], v61, s[52:55], 0 offen offset:{16*j}")
    k.label("K3_END")
    k("s_endpgm")
    return k.text(), dict(vgpr=96, sgpr=72, lds=NS*2*64*KS*2, grid=320, block=256)
```

```python
import sys
import layout as L
NAME = "gated_mix__grouped_kv_mqa__mixer_token_mlp__prompt"

class K:
    def __init__(self):
        self.L = []
        self.uid = 0
    def __call__(self, s):
        for line in s.strip("\n").split("\n"):
            self.L.append("    " + line.strip())
    def label(self, n):
        self.L.append(n + ":")
    def new(self, p):
        self.uid += 1
        return f"{p}_{self.uid}"
    def text(self):
        return "\n".join(self.L) + "\n"

def srd(k, d, lo, hi, size):
    k(f"""s_mov_b32 s{d}, s{lo}
          s_and_b32 s{d+1}, s{hi}, 0xffff
          s_mov_b32 s{d+2}, {size}
          s_mov_b32 s{d+3}, 0x00020000""")

def srd_off(k, d, lo, hi, off, size):
    k(f"""s_add_u32 s{d}, s{lo}, {off}
          s_addc_u32 s{d+1}, s{hi}, 0
          s_and_b32 s{d+1}, s{d+1}, 0xffff
          s_mov_b32 s{d+2}, {size}
          s_mov_b32 s{d+3}, 0x00020000""")

KOFF = dict(x=0, wq=8, wk=16, wv=24, wo=32, bx=40, w1=48, b1=56, w2=64, b2=72, gw=80, out=88, dbg=96, ws=104)

class Opnd:
    def __init__(self, typ, srd, pitch, voff, sbase, rd):
        self.typ = typ
        self.srd = srd
        self.pitch = pitch
        self.voff = voff
        self.sbase = sbase
        self.rd = rd

def dma_tile(k, op, KS, k0, ldsoff, s_wlds, s_tmp):
    ipw = (64 * KS * 2 // 1024) // 4
    for ii in range(ipw):
        if op.typ == 'tr':
            g = (k0 + 8 * ii) * op.pitch
            v = op.voff[0]
        else:
            rows_per = 1024 // (KS * 2)
            g = rows_per * ii * op.pitch + k0 * 2
            v = op.voff[ii % len(op.voff)]
        k(f"s_add_u32 m0, s{s_wlds}, {ldsoff + ii * 1024}")
        k(f"s_add_u32 s{s_tmp}, s{op.sbase}, {g}")
        k(f"buffer_load_dwordx4 v{v}, s[{op.srd}:{op.srd+3}], s{s_tmp} offen lds")

def frag_read(k, op, KS, kk, ldsoff, dst, vtmp):
    if op.typ == 'tr':
        k(f"ds_read_b64_tr_b16 v[{dst}:{dst+1}], v{op.rd} offset:{ldsoff + (16*kk)*128}")
        k(f"ds_read_b64_tr_b16 v[{dst+2}:{dst+3}], v{op.rd} offset:{ldsoff + (16*kk+4)*128}")
        return 2
    else:
        if kk == 0:
            k(f"ds_read_b128 v[{dst}:{dst+3}], v{op.rd} offset:{ldsoff}")
        else:
            k(f"v_xor_b32 v{vtmp}, {kk*32}, v{op.rd}")
            k(f"ds_read_b128 v[{dst}:{dst+3}], v{vtmp} offset:{ldsoff}")
        return 1

def gemm_ring(k, steps, KS, NS, lds0, s_wlds, s_tmp, fragM, fragN, vtmp, extra_vm=0, pre_issued=False, barrier_hook=None):
    TS = 64 * KS * 2
    ipw = (TS // 1024) // 4
    D = 2 * ipw
    n = len(steps)
    def issue(t):
        opM, opN, k0M, k0N, acc, first = steps[t]
        b = lds0 + (t % NS) * 2 * TS
        dma_tile(k, opM, KS, k0M, b, s_wlds, s_tmp)
        dma_tile(k, opN, KS, k0N, b + TS, s_wlds, s_tmp)
    if not pre_issued:
        for t in range(min(NS - 1, n)):
            issue(t)
    nk = KS // 16
    for t in range(n):
        opM, opN, k0M, k0N, acc, first = steps[t]
        inflight_after = min(n - 1, t + NS - 2) - t
        k(f"s_waitcnt vmcnt({inflight_after * D})")
        k("s_barrier")
        if t + NS - 1 < n:
            issue(t + NS - 1)
        b = lds0 + (t % NS) * 2 * TS
        cnt = []
        def rd(kk):
            c = frag_read(k, opM, KS, kk, b, fragM + 4 * (kk % 3), vtmp)
            c += frag_read(k, opN, KS, kk, b + TS, fragN + 4 * (kk % 3), vtmp + 1)
            cnt.append(c)
        rd(0); rd(1)
        for kk in range(nk):
            if kk + 2 < nk:
                rd(kk + 2)
            pend = sum(cnt[kk + 1:])
            k(f"s_waitcnt lgkmcnt({pend})")
            a = fragM + 4 * (kk % 3); bb = fragN + 4 * (kk % 3)
            c = "0" if (first and kk == 0) else f"v[{acc}:{acc+15}]"
            k(f"v_mfma_f32_32x32x16_bf16 v[{acc}:{acc+15}], v[{a}:{a+3}], v[{bb}:{bb+3}], {c}")

def lane_setup_gemm(k, KS, vl, vt, tr_voff, dir_voff, tr_rd, dir_rd, wm_s=None):
    pass

def tr_voff(k, dst, vl, pitch_s, t0, t1):
    k(f"""v_lshrrev_b32 v{t0}, 3, v{vl}
          v_mul_lo_u32 v{t0}, v{t0}, s{pitch_s}
          v_lshrrev_b32 v{t1}, 4, v{vl}
          v_and_b32 v{t1}, 1, v{t1}
          v_lshlrev_b32 v{t1}, 2, v{t1}
          v_and_b32 v{dst}, 7, v{vl}
          v_xor_b32 v{dst}, v{dst}, v{t1}
          v_lshlrev_b32 v{dst}, 4, v{dst}
          v_add_u32 v{dst}, v{dst}, v{t0}""")

def dir_voff64(k, dsts, vl, pitch_s, t0, t1):
    for par, dst in enumerate(dsts):
        k(f"""v_lshrrev_b32 v{t0}, 3, v{vl}
              v_mul_lo_u32 v{t0}, v{t0}, s{pitch_s}
              v_lshrrev_b32 v{t1}, 4, v{vl}
              v_add_u32 v{t1}, {4*par}, v{t1}
              v_and_b32 v{dst}, 7, v{vl}
              v_xor_b32 v{dst}, v{dst}, v{t1}
              v_lshlrev_b32 v{dst}, 4, v{dst}
              v_add_u32 v{dst}, v{dst}, v{t0}""")

def dir_voff128(k, dsts, vl, pitch_s, t0, t1):
    for par, dst in enumerate(dsts):
        k(f"""v_lshrrev_b32 v{t0}, 4, v{vl}
              v_add_u32 v{t1}, {4*par}, v{t0}
              v_mul_lo_u32 v{t0}, v{t0}, s{pitch_s}
              v_and_b32 v{dst}, 15, v{vl}
              v_xor_b32 v{dst}, v{dst}, v{t1}
              v_lshlrev_b32 v{dst}, 4, v{dst}
              v_add_u32 v{dst}, v{dst}, v{t0}""")

def tr_rd(k, dst, vl, half_s, t0, t1):
    k(f"""v_and_b32 v{t0}, 3, v{vl}
          v_lshlrev_b32 v{t0}, 3, v{t0}
          v_lshrrev_b32 v{t1}, 4, v{vl}
          v_and_b32 v{t1}, 1, v{t1}
          v_lshlrev_b32 v{t1}, 5, v{t1}
          v_add_u32 v{t0}, v{t0}, v{t1}
          s_lshl_b32 s{half_s}, s{half_s}, 6
          v_add_u32 v{t0}, s{half_s}, v{t0}
          v_lshrrev_b32 v{t1}, 3, v{vl}
          v_and_b32 v{t1}, 1, v{t1}
          v_lshlrev_b32 v{t1}, 6, v{t1}
          v_xor_b32 v{t0}, v{t0}, v{t1}
          v_lshrrev_b32 v{t1}, 2, v{vl}
          v_and_b32 v{t1}, 3, v{t1}
          v_lshlrev_b32 v{t1}, 7, v{t1}
          v_add_u32 v{t0}, v{t0}, v{t1}
          v_lshrrev_b32 v{t1}, 5, v{vl}
          v_lshlrev_b32 v{t1}, 10, v{t1}
          v_add_u32 v{dst}, v{t0}, v{t1}""")

def dir_rd(k, dst, vl, half_s, KS, t0, t1):
    rb = KS * 2
    sh = {128: 7, 256: 8}[rb]
    k(f"""v_and_b32 v{t0}, 31, v{vl}
          s_lshl_b32 s{half_s}, s{half_s}, 5
          v_add_u32 v{t0}, s{half_s}, v{t0}""")
    if KS == 64:
        k(f"""v_lshrrev_b32 v{t1}, 1, v{t0}
              v_and_b32 v{t1}, 7, v{t1}""")
    else:
        k(f"v_and_b32 v{t1}, 15, v{t0}")
    k(f"""v_lshrrev_b32 v{dst}, 5, v{vl}
          v_xor_b32 v{dst}, v{dst}, v{t1}
          v_lshlrev_b32 v{dst}, 4, v{dst}
          v_lshlrev_b32 v{t0}, {sh}, v{t0}
          v_add_u32 v{dst}, v{dst}, v{t0}""")

def prologue(k, nwg):
    k(f"""s_cmp_ge_u32 s2, {nwg}
          s_cbranch_scc1 {k.endl}
          v_lshrrev_b32 v1, 6, v0
          v_and_b32 v2, 63, v0
          s_nop 0
          v_readfirstlane_b32 s3, v1""")

def gen_k1():
    k = K(); k.endl = "K1_END"
    prologue(k, 576)
    k(f"""s_load_dwordx2 s[4:5], s[0:1], {KOFF['x']}
          s_load_dwordx2 s[6:7], s[0:1], {KOFF['wq']}
          s_load_dwordx2 s[20:21], s[0:1], {KOFF['ws']}
          s_load_dwordx2 s[22:23], s[0:1], {KOFF['wk']}
          s_load_dwordx2 s[24:25], s[0:1], {KOFF['wv']}
          s_load_dwordx2 s[26:27], s[0:1], {KOFF['gw']}
          s_waitcnt lgkmcnt(0)""")
    srd(k, 8, 4, 5, 2048*640*2)
    k("""s_cmp_ge_u32 s2, 320
         s_cbranch_scc1 K1_ROWS""")
    srd(k, 12, 6, 7, 640*640*2)
    srd_off(k, 16, 20, 21, L.Q, 2048*640*2)
    KS, NS = 64, 3
    k("""s_and_b32 s60, s2, 7
         s_lshr_b32 s61, s2, 3
         s_mul_hi_u32 s28, s61, 0x33333334
         s_mul_i32 s29, s28, 5
         s_sub_u32 s29, s61, s29
         s_and_b32 s34, s60, 3
         s_lshl_b32 s34, s34, 3
         s_add_u32 s28, s28, s34
         s_lshr_b32 s34, s60, 2
         s_mul_i32 s34, s34, 5
         s_add_u32 s29, s29, s34
         s_mov_b32 s30, 1280""")
    ipw = 2
    k(f"""s_mul_i32 s31, s3, {ipw*8*1280}
          s_lshl_b32 s34, s29, 7
          s_add_u32 s31, s31, s34
          s_lshl_b32 s32, s28, 6
          s_mul_i32 s34, s3, {ipw*8}
          s_add_u32 s32, s32, s34
          s_mul_i32 s32, s32, 1280
          s_lshl_b32 s33, s3, {10+1}
          s_and_b32 s35, s3, 1
          s_lshr_b32 s36, s3, 1""")
    k("s_mov_b32 s37, s35\n s_mov_b32 s38, s36")
    tr_voff(k, 3, 2, 30, 10, 11)
    dir_voff64(k, [4, 5], 2, 30, 10, 11)
    tr_rd(k, 6, 2, 37, 10, 11)
    dir_rd(k, 7, 2, 38, KS, 10, 11)
    opM = Opnd('tr', 12, 1280, [3], 31, 6)
    opN = Opnd('dir', 8, 1280, [4, 5], 32, 7)
    ACC = 16
    steps = [(opM, opN, t*KS, t*KS, ACC, t == 0) for t in range(640 // KS)]
    gemm_ring(k, steps, KS, NS, 0, 33, 34, 32, 44, 12)
    k(f"""v_and_b32 v10, 31, v2
          s_lshl_b32 s34, s28, 6
          s_lshl_b32 s39, s36, 5
          s_add_u32 s34, s34, s39
          v_add_u32 v10, s34, v10
          v_mul_lo_u32 v10, v10, s30
          v_lshrrev_b32 v11, 5, v2
          v_lshlrev_b32 v11, 3, v11
          v_add_u32 v10, v10, v11
          s_lshl_b32 s34, s29, 7
          s_lshl_b32 s39, s35, 6
          s_add_u32 s34, s34, s39
          v_add_u32 v10, s34, v10
          s_nop 7
          s_nop 3""")
    k("s_mov_b32 s34, 0x3ea52b5c")
    for j in range(16):
        k(f"v_mul_f32 v{ACC+j}, s34, v{ACC+j}")
    for j in range(4):
        a = ACC + 4*j
        k(f"""v_cvt_pk_bf16_f32 v{56+2*j}, v{a}, v{a+1}
              v_cvt_pk_bf16_f32 v{57+2*j}, v{a+2}, v{a+3}""")
    for j in range(4):
        k(f"buffer_store_dwordx2 v[{56+2*j}:{57+2*j}], v10, s[16:19], 0 offen offset:{16*j}")
    k("s_endpgm")
    k.label("K1_ROWS")
    k("s_mov_b32 s30, 1280\n s_cmp_ge_u32 s2, 448\n s_cbranch_scc1 K1_KV")
    k("s_sub_u32 s28, s2, 320")
    srd(k, 40, 26, 27, 640*2)
    srd_off(k, 44, 20, 21, L.H, 2048*640*2)
    srd_off(k, 48, 20, 21, L.G, 2048*4)
    k(f"""v_lshrrev_b32 v4, 4, v0
          v_and_b32 v5, 15, v0
          s_lshl_b32 s34, s28, 4
          v_add_u32 v6, s34, v4
          v_mul_lo_u32 v7, v6, s30
          v_lshlrev_b32 v8, 4, v5
          v_add_u32 v7, v7, v8""")
    NP = 20
    X0 = 24; GW0 = 44; XF = 64
    for i in range(5):
        k(f"buffer_load_dwordx4 v[{X0+4*i}:{X0+4*i+3}], v7, s[8:11], 0 offen offset:{256*i}")
    for i in range(5):
        k(f"buffer_load_dwordx4 v[{GW0+4*i}:{GW0+4*i+3}], v8, s[40:43], 0 offen offset:{256*i}")
    k("s_waitcnt vmcnt(5)\n v_mov_b32 v10, 0\n v_mov_b32 v11, 0")
    for i in range(NP):
        k(f"""v_lshlrev_b32 v{XF+2*i}, 16, v{X0+i}
              v_and_b32 v{XF+2*i+1}, 0xffff0000, v{X0+i}
              v_add_f32 v10, v10, v{XF+2*i}
              v_add_f32 v10, v10, v{XF+2*i+1}""")
    def red16(r, t):
        for m in (0x041F, 0x081F, 0x101F, 0x201F):
            k(f"""ds_swizzle_b32 v{t}, v{r} offset:{m}
                  s_waitcnt lgkmcnt(0)
                  v_add_f32 v{r}, v{r}, v{t}""")
    red16(10, 12)
    k(f"""s_mov_b32 s34, 0x3acccccd
          v_mul_f32 v10, s34, v10
          v_mov_b32 v16, 0""")
    for i in range(2*NP):
        k(f"""v_sub_f32 v12, v{XF+i}, v10
              v_fmac_f32 v16, v12, v12""")
    red16(16, 12)
    k("s_waitcnt vmcnt(0)")
    for i in range(NP):
        gr = GW0 + i
        k(f"""v_lshlrev_b32 v14, 16, v{gr}
              v_and_b32 v15, 0xffff0000, v{gr}
              v_mul_f32 v14, v{XF+2*i}, v14
              v_mul_f32 v15, v{XF+2*i+1}, v15
              v_cvt_pk_bf16_f32 v14, v14, v15
              v_lshlrev_b32 v15, 16, v14
              v_and_b32 v14, 0xffff0000, v14
              v_add_f32 v11, v11, v15
              v_add_f32 v11, v11, v14""")
    red16(11, 12)
    k(f"""v_mul_f32 v16, s34, v16
          v_cvt_pk_bf16_f32 v17, v10, v16
          v_lshlrev_b32 v18, 16, v17
          v_and_b32 v19, 0xffff0000, v17
          v_add_f32 v19, 0x3727c5ac, v19
          v_cvt_pk_bf16_f32 v19, v19, v19
          v_and_b32 v19, 0xffff0000, v19
          v_sqrt_f32 v19, v19
          s_nop 0
          v_cvt_pk_bf16_f32 v19, v19, v19
          v_and_b32 v19, 0xffff0000, v19
          v_rcp_f32 v20, v19
          s_nop 0""")
    for i in range(NP):
        k(f"""v_sub_f32 v12, v{XF+2*i}, v18
              v_sub_f32 v13, v{XF+2*i+1}, v18
              v_cvt_pk_bf16_f32 v12, v12, v13
              v_and_b32 v13, 0xffff0000, v12
              v_lshlrev_b32 v12, 16, v12
              v_mul_f32 v14, v12, v20
              v_mul_f32 v15, v13, v20
              v_fma_f32 v12, -v14, v19, v12
              v_fma_f32 v13, -v15, v19, v13
              v_fma_f32 v14, v12, v20, v14
              v_fma_f32 v15, v13, v20, v15
              v_cvt_pk_bf16_f32 v{X0+i}, v14, v15""")
    for i in range(5):
        k(f"buffer_store_dwordx4 v[{X0+4*i}:{X0+4*i+3}], v7, s[44:47], 0 offen offset:{256*i}")
    k(f"""v_cvt_pk_bf16_f32 v11, v11, v11
          v_and_b32 v11, 0xffff0000, v11
          v_mul_f32 v11, 0xbfb8aa3b, v11
          v_exp_f32 v11, v11
          s_nop 0
          v_add_f32 v11, 1.0, v11
          v_rcp_f32 v11, v11
          s_nop 0
          v_cvt_pk_bf16_f32 v11, v11, v11
          v_and_b32 v11, 0xffff0000, v11
          v_lshlrev_b32 v12, 2, v6
          v_cmp_eq_u32 vcc, 0, v5
          s_and_saveexec_b64 s[36:37], vcc
          buffer_store_dword v11, v12, s[48:51], 0 offen
          s_endpgm""")
    k.label("K1_KV")
    k("s_cmp_ge_u32 s2, 512\n s_cbranch_scc1 K1_PF")
    k("s_sub_u32 s28, s2, 448")
    srd(k, 12, 22, 23, 640*20*2)
    srd(k, 16, 24, 25, 640*20*2)
    srd_off(k, 52, 20, 21, L.KA, 2048*32)
    srd_off(k, 56, 20, 21, L.KB, 2048*8)
    srd_off(k, 60, 20, 21, L.VT, 21*4096)
    WVL = 26112
    k(f"""s_and_b32 s35, s3, 1
          s_lshr_b32 s36, s3, 1
          v_and_b32 v4, 15, v2
          v_lshrrev_b32 v5, 4, v2
          s_lshl_b32 s34, s28, 5
          s_lshl_b32 s37, s35, 4
          s_add_u32 s39, s34, s37
          v_add_u32 v6, s39, v4
          v_mul_lo_u32 v7, v6, s30
          v_lshlrev_b32 v8, 4, v5
          v_add_u32 v7, v7, v8
          v_lshlrev_b32 v3, 4, v2""")
    for i in range(7):
        lab = k.new("K1_SK")
        if i == 6:
            k(f"s_cmp_ge_u32 s3, 1\n s_cbranch_scc1 {lab}")
        k(f"""s_lshl_b32 s34, s3, 10
              s_add_u32 s34, s34, {i*4096}
              s_mov_b32 m0, s34
              s_nop 0
              buffer_load_dwordx4 v3, s[12:15], s34 offen lds
              s_add_u32 s37, s34, {WVL}
              s_mov_b32 m0, s37
              s_nop 0
              buffer_load_dwordx4 v3, s[16:19], s34 offen lds""")
        if i == 6:
            k.label(lab)
    XF = 64
    for ks in range(20):
        k(f"buffer_load_dwordx4 v[{XF+4*ks}:{XF+4*ks+3}], v7, s[8:11], 0 offen offset:{64*ks}")
    k(f"""v_lshrrev_b32 v9, 2, v4
          v_lshlrev_b32 v10, 3, v5
          v_add_u32 v9, v9, v10
          v_mul_u32_u24 v9, 40, v9
          v_and_b32 v10, 3, v4
          v_lshlrev_b32 v10, 3, v10
          v_add_u32 v9, v9, v10
          s_mul_i32 s37, s36, {WVL}
          v_add_u32 v9, s37, v9
          s_waitcnt vmcnt(0)
          s_barrier""")
    WF = 16
    lab_v = "K1_VPATH"; lab_done = "K1_KVDONE"
    def kvloop(isV):
        def rd(ks):
            f = WF + 8*(ks % 3)
            for ct in range(2):
                o = ks*32*40 + ct*32
                k(f"ds_read_b64_tr_b16 v[{f+4*ct}:{f+4*ct+1}], v9 offset:{o}")
                k(f"ds_read_b64_tr_b16 v[{f+4*ct+2}:{f+4*ct+3}], v9 offset:{o+160}")
        rd(0); rd(1)
        for ks in range(20):
            if ks + 2 < 20: rd(ks + 2)
            k(f"s_waitcnt lgkmcnt({4*min(2, 19-ks)})")
            f = WF + 8*(ks % 3)
            for ct in range(2):
                acc = 40 + 4*ct
                c = "0" if ks == 0 else f"v[{acc}:{acc+3}]"
                w = f"v[{f+4*ct}:{f+4*ct+3}]"; x = f"v[{XF+4*ks}:{XF+4*ks+3}]"
                a, b = (x, w) if isV else (w, x)
                k(f"v_mfma_f32_16x16x32_bf16 v[{acc}:{acc+3}], {a}, {b}, {c}")
        k("s_nop 7\n s_nop 1")
    k(f"s_cmp_eq_u32 s36, 1\n s_cbranch_scc1 {lab_v}")
    kvloop(False)
    k(f"""v_cvt_pk_bf16_f32 v48, v40, v41
          v_cvt_pk_bf16_f32 v49, v42, v43
          v_cvt_pk_bf16_f32 v50, v44, v45
          v_cvt_pk_bf16_f32 v51, v46, v47
          v_lshlrev_b32 v10, 5, v6
          v_lshlrev_b32 v11, 3, v5
          v_add_u32 v10, v10, v11
          v_lshlrev_b32 v11, 3, v6
          buffer_store_dwordx2 v[48:49], v10, s[52:55], 0 offen
          v_cmp_gt_u32 vcc, 16, v2
          s_and_saveexec_b64 s[38:39], vcc
          buffer_store_dwordx2 v[50:51], v11, s[56:59], 0 offen
          s_endpgm""")
    k.label(lab_v)
    kvloop(True)
    k(f"""v_cvt_pk_bf16_f32 v48, v40, v41
          v_cvt_pk_bf16_f32 v49, v42, v43
          v_cvt_pk_bf16_f32 v50, v44, v45
          v_cvt_pk_bf16_f32 v51, v46, v47
          v_and_b32 v10, 1, v5
          v_lshlrev_b32 v10, 3, v10
          v_lshrrev_b32 v11, 1, v5
          v_lshlrev_b32 v11, 2, v11
          v_add_u32 v10, v10, v11
          v_add_u32 v10, s39, v10
          v_lshlrev_b32 v10, 1, v10
          v_lshlrev_b32 v11, 12, v4
          v_add_u32 v10, v10, v11
          buffer_store_dwordx2 v[48:49], v10, s[60:63], 0 offen
          v_mov_b32 v12, 0x3f803f80
          v_cmp_eq_u32 vcc, 4, v4
          s_nop 1
          v_cndmask_b32 v50, v50, v12, vcc
          v_cndmask_b32 v51, v51, v12, vcc
          v_add_u32 v10, 0x10000, v10
          v_cmp_gt_u32 vcc, 5, v4
          s_and_saveexec_b64 s[38:39], vcc
          buffer_store_dwordx2 v[50:51], v10, s[60:63], 0 offen""")
    k.label(lab_done)
    k("s_endpgm")
    k.label("K1_PF")
    k(f"""s_load_dwordx2 s[4:5], s[0:1], {KOFF['w1']}
          s_waitcnt lgkmcnt(0)""")
    srd(k, 12, 4, 5, 2048*1536*2)
    k(f"""s_sub_u32 s28, s2, 512
          s_lshl_b32 s28, s28, 2
          s_add_u32 s28, s28, s3
          s_mul_i32 s28, s28, 24576
          v_lshlrev_b32 v3, 7, v2
          buffer_load_dword v4, v3, s[12:15], s28 offen
          s_add_u32 s28, s28, 8192
          buffer_load_dword v5, v3, s[12:15], s28 offen
          s_add_u32 s28, s28, 8192
          buffer_load_dword v6, v3, s[12:15], s28 offen""")
    k("s_waitcnt vmcnt(0)")
    k.label("K1_END")
    k("s_endpgm")
    return k.text(), dict(vgpr=144, sgpr=80, lds=53248, grid=576, block=256)

def kernel_wrap(label, body, meta):
    v = meta['vgpr']
    s = f""".globl {label}
.p2align 8
.type {label},@function
{label}:
{body}"""
    kd = f""".p2align 6
.amdhsa_kernel {label}
  .amdhsa_next_free_vgpr {v}
  .amdhsa_next_free_sgpr {meta['sgpr']}
  .amdhsa_accum_offset {(v+3)//4*4}
  .amdhsa_group_segment_fixed_size 0
  .amdhsa_kernarg_size 112
  .amdhsa_user_sgpr_count 2
  .amdhsa_user_sgpr_kernarg_segment_ptr 1
  .amdhsa_system_sgpr_workgroup_id_x 1
.end_amdhsa_kernel
"""
    return s, kd

def main():
    ks = []
    ks.append(("k1_kernel",) + gen_k1())
    import gen2
    if hasattr(gen2, "gen_k2"):
        ks.append(("k2_kernel",) + gen2.gen_k2(0))
    import gen3
    ks.append(("k3_kernel",) + gen3.gen_k3())
    head = open(f"cdna_kernels/{NAME}.s.ref").read().split("; Override launch")[0]
    out = head
    for label, body, meta in ks:
        out += f"; @launch kernel={label} grid=({meta['grid']},1,1) block=({meta['block']},1,1) lds={meta['lds']}\n"
    out += '.amdgcn_target "amdgcn-amd-amdhsa--gfx950"\n.text\n'
    kds = ""
    for label, body, meta in ks:
        s, kd = kernel_wrap(label, body, meta)
        out += s; kds += kd
    out += 'TEXT_END:\n.section .rodata,"a"\n' + kds
    open(f"cdna_kernels/{NAME}.s", "w").write(out)

if __name__ == "__main__":
    main()
```
